```python
import torch

def _softmax(x, axis=-1):
    return torch.softmax(x, dim=axis)
def _gelu(x):
    return torch.nn.functional.gelu(x, approximate="tanh")
def _silu(x):
    return torch.nn.functional.silu(x)
def _sigmoid(x):
    return torch.sigmoid(x)
def _layernorm(x, axis=-1, eps=1e-5):
    m = x.mean(dim=axis, keepdim=True)
    v = x.var(dim=axis, keepdim=True, unbiased=False)
    return (x - m) / torch.sqrt(v + eps)
def _scatter_add(tgt, idx, src, axis=0):
    return tgt.clone().index_add_(axis, idx, src)
def _segment_sum(src, seg, n):
    out = torch.zeros((n,) + src.shape[1:], dtype=src.dtype)
    return out.index_add_(0, seg, src)
def _pad(x, pw):
    flat = tuple(v for pair in reversed(pw) for v in pair)
    return torch.nn.functional.pad(x, flat)

kernel_name = 'standalone__mha_block_cached__near_ridge'

def setup_inputs():

    _w = (lambda a: (lambda t: t.to(torch.bfloat16) if t.is_floating_point() else t)(torch.as_tensor(a)))
    B, Sq, D = 8, 64, 1024
    H, Sk, Dh = 32, 64, 128
    return {
        "x": _w((lambda *s: torch.randn(*s, dtype=torch.bfloat16) * 0.8)(B, Sq, D)),
        "k_cache": _w((lambda *s: torch.randn(*s, dtype=torch.bfloat16) * 0.8)(B, H, Sk, Dh)),
        "v_cache": _w((lambda *s: torch.randn(*s, dtype=torch.bfloat16) * 0.05)(B, H, Sk, Dh)),
        "wq": _w((lambda *s: torch.randn(*s, dtype=torch.bfloat16) * 0.8)(D, H * Dh) * (D ** -0.5)),
        "wo": _w((lambda *s: torch.randn(*s, dtype=torch.bfloat16) * 0.05)(H * Dh, D) * ((H * Dh) ** -0.5)),
    }

def reference(x, k_cache, v_cache, wq, wo):
    B, Sq, D = x.shape
    H, Dh = 32, 128
    q = (lambda x, *d: x.permute(*d))((x @ wq).reshape(B, Sq, H, Dh), 0, 2, 1, 3)
    scores = torch.einsum("bhqd,bhkd->bhqk", q, k_cache) * (Dh ** -0.5)
    p = _softmax(scores, axis=-1)
    o = torch.einsum("bhqk,bhkd->bhqd", p, v_cache)
    return (lambda x, *d: x.permute(*d))(o, 0, 2, 1, 3).reshape(B, Sq, H * Dh) @ wo
```

```python
import re

TRANS = ("v_exp_f32", "v_log_f32", "v_rcp_f32", "v_rsq_f32", "v_sqrt_f32", "v_sin_f32", "v_cos_f32")
MFMA_PASSES = {"v_mfma_f32_32x32x16_bf16": 8, "v_mfma_f32_16x16x32_bf16": 4}

_reg_re = re.compile(r"^(-|abs\()?([vsa])(\d+)\)?$")
_rng_re = re.compile(r"^(-)?([vsa])\[(\d+):(\d+)\]$")

def regs_of(tok):
    tok = tok.strip()
    m = _reg_re.match(tok)
    if m: return {(m.group(2), int(m.group(3)))}
    m = _rng_re.match(tok)
    if m: return {(m.group(2), i) for i in range(int(m.group(3)), int(m.group(4)) + 1)}
    if tok in ("m0", "exec", "scc"): return {(tok, 0)}
    if tok == "vcc": return {("s", 106), ("s", 107)}
    if tok == "vcc_lo": return {("s", 106)}
    if tok == "vcc_hi": return {("s", 107)}
    return set()

class Ins:
    __slots__ = ("text", "mn", "ops", "mods", "dst", "src", "kind", "n", "srcA", "srcB", "srcC", "auto")
    def __init__(self, text, auto=False):
        self.text = text.strip(); self.auto = auto
        t = self.text.split(";")[0].split("//")[0].strip()
        parts = t.split(None, 1)
        self.mn = mn = parts[0]
        rest = parts[1] if len(parts) > 1 else ""
        toks = [x.strip() for x in rest.split(",")] if rest else []
        mods = []
        if toks:
            last = toks[-1].split()
            if last:
                toks[-1] = last[0]; mods = last[1:]
        self.ops = toks; self.mods = mods
        self.dst = set(); self.src = set(); self.n = 1
        self.srcA = self.srcB = self.srcC = None
        R = [regs_of(x) for x in toks]
        def rd(*idx):
            for i in idx:
                if i < len(R): self.src |= R[i]
        def wr(*idx):
            for i in idx:
                if i < len(R): self.dst |= R[i]
        if mn == "s_nop":
            self.kind = "nop"; self.n = int(toks[0], 0) + 1
        elif mn in ("s_waitcnt", "s_barrier", "s_endpgm", "s_setprio", "s_sleep"):
            self.kind = "sctl"
        elif mn.startswith("s_cbranch") or mn == "s_branch":
            self.kind = "branch"
        elif mn.startswith("s_load") or mn in ("s_memtime", "s_memrealtime"):
            self.kind = "smem"; wr(0); rd(*range(1, len(R)))
        elif mn.startswith("s_cmp"):
            self.kind = "salu"; rd(*range(len(R)))
        elif mn in ("s_and_saveexec_b64", "s_or_saveexec_b64"):
            self.kind = "salu"; wr(0); rd(1); self.dst |= {("exec", 0)}; self.src |= {("exec", 0)}
        elif mn.startswith("s_"):
            self.kind = "salu"; wr(0); rd(*range(1, len(R)))
            if mn in ("s_addk_i32", "s_mulk_i32"): rd(0)
        elif mn.startswith("v_mfma"):
            self.kind = "mfma"; wr(0); rd(1, 2, 3)
            self.srcA, self.srcB, self.srcC = R[1], R[2], R[3]
        elif mn.startswith("v_"):
            self.kind = "valu"
            if "swap" in mn:
                wr(0, 1); rd(0, 1)
            elif mn.startswith("v_add_co") or mn.startswith("v_sub_co") or mn.startswith("v_addc") or mn.startswith("v_subb"):
                wr(0, 1); rd(*range(2, len(R)))
            elif mn.startswith("v_fmac") or mn.startswith("v_pk_fmac"):
                wr(0); rd(*range(0, len(R)))
            else:
                wr(0); rd(*range(1, len(R)))
        elif mn.startswith("buffer_load") or mn.startswith("buffer_atomic"):
            self.kind = "vmem"
            if "lds" in mods:
                rd(*range(len(R))); self.src |= {("m0", 0)}
            else:
                wr(0); rd(*range(1, len(R)))
        elif mn.startswith("buffer_store"):
            self.kind = "vmem"; rd(*range(len(R)))
        elif mn.startswith("global_load_lds"):
            self.kind = "vmem"; rd(*range(len(R))); self.src |= {("m0", 0)}
        elif mn.startswith("global_load"):
            self.kind = "vmem"; wr(0); rd(*range(1, len(R)))
        elif mn.startswith("global_store"):
            self.kind = "vmem"; rd(*range(len(R)))
        elif mn.startswith("ds_read") or mn.startswith("ds_bpermute") or mn.startswith("ds_swizzle"):
            self.kind = "ds"; wr(0); rd(*range(1, len(R)))
        elif mn.startswith("ds_write"):
            self.kind = "ds"; rd(*range(len(R)))
        else:
            raise ValueError("unknown instruction: " + text)
        if self.kind in ("valu", "mfma", "vmem", "ds"):
            self.src |= {("exec", 0)}
    @property
    def is_lds_dma(self): return self.kind == "vmem" and ("lds" in self.mods or self.mn.startswith("global_load_lds"))
    @property
    def is_store(self): return self.mn.startswith(("buffer_store", "global_store"))
    @property
    def is_dpp(self): return "dpp" in self.mn or any(m.startswith(("row_", "quad_perm", "wave_")) for m in self.mods)

class Asm:
    def __init__(self):
        self.items = []
    def __call__(self, text):
        for ln in text.strip().split("\n"):
            ln = ln.strip()
            if not ln: continue
            if ln.startswith(";"): self.items.append(("comment", ln)); continue
            if ln.endswith(":"): self.items.append(("label", ln[:-1])); continue
            self.items.append(Ins(ln))
    def comment(self, t): self.items.append(("comment", "; " + t))
    def label(self, name): self.items.append(("label", name))
    def loop_begin(self, name, count): self.items.append(("loop_begin", name, count))
    def loop_end(self, name): self.items.append(("loop_end", name))
    def trace(self):
        out = []
        def run(i, stop):
            while i < len(self.items):
                it = self.items[i]
                if isinstance(it, tuple) and it[0] == "loop_begin":
                    j = i + 1; depth = 1
                    while depth:
                        t = self.items[j]
                        if isinstance(t, tuple) and t[0] == "loop_begin": depth += 1
                        if isinstance(t, tuple) and t[0] == "loop_end": depth -= 1
                        j += 1
                    for _ in range(it[2]): run(i + 1, j - 1)
                    i = j; continue
                if i == stop: return
                if isinstance(it, Ins): out.append(i)
                i += 1
                if i == stop: return
        run(0, -1)
        return out
    def _hazard_scan(self):
        need = {}
        pos = 0
        valu_w = {}; trans_w = {}; mfma_w = {}; mfma_c = {}; valu_sw = {}; store_d = {}; m0_w = None; valu_exec = None
        for idx in self.trace():
            ins = self.items[idx]
            req = 0
            def want(ppos, ws):
                nonlocal req
                if ppos is None: return
                d = ws - (pos - ppos - 1)
                if d > req: req = d
            k = ins.kind
            vs = {r for r in ins.src if r[0] in "va"}; vd = {r for r in ins.dst if r[0] in "va"}
            ss = {r for r in ins.src if r[0] == "s"}
            if k == "mfma":
                for r in vs: want(valu_w.get(r), 2)
            if k in ("mfma", "valu", "vmem", "ds"):
                for r in (vs | vd):
                    if r in mfma_w:
                        ppos, passes, tup, mn = mfma_w[r]
                        if k == "mfma":
                            if r in ins.srcC and not (r in ins.srcA or r in ins.srcB):
                                if ins.srcC == tup and ins.mn == mn: ws = 0 if passes >= 4 else 2
                                else: ws = {2: 4, 4: 6, 8: 10, 16: 18}[passes]
                            elif r in ins.srcA or r in ins.srcB:
                                ws = {2: 5, 4: 8, 8: 12, 16: 20}[passes]
                            else:
                                ws = {2: 4, 4: 6, 8: 10, 16: 18}[passes]
                        else:
                            ws = {2: 5, 4: 8, 8: 12, 16: 20}[passes]
                        want(ppos, ws)
            if k == "valu":
                for r in vd:
                    if r in mfma_c:
                        ppos, passes = mfma_c[r]; want(ppos, {2: 1, 4: 3, 8: 7, 16: 15}[passes])
                    if r in store_d: want(store_d[r], 2)
                for r in ss: want(valu_sw.get(r), 2)
                if ins.mn.startswith(("v_readfirstlane", "v_readlane")):
                    for r in vs: want(valu_w.get(r), 1)
                if "permlane" in ins.mn or ins.is_dpp:
                    for r in vs: want(valu_w.get(r), 2)
                if ins.mn not in TRANS:
                    for r in vs: want(trans_w.get(r), 1)
            if k in ("vmem", "ds"):
                for r in vd:
                    if r in store_d: want(store_d[r], 1)
            if k == "vmem":
                for r in ss: want(valu_sw.get(r), 5)
                if ins.is_lds_dma: want(m0_w, 1)
            if k == "salu":
                for r in ss: want(valu_sw.get(r), 1)
            if req > 0: need[idx] = max(need.get(idx, 0), req)
            if k == "valu":
                for r in vd:
                    valu_w[r] = pos
                    if ins.mn in TRANS: trans_w[r] = pos
                    else: trans_w.pop(r, None)
                    mfma_w.pop(r, None)
                for r in ins.dst:
                    if r[0] == "s": valu_sw[r] = pos
            elif k == "mfma":
                p = MFMA_PASSES[ins.mn]
                for r in vd:
                    mfma_w[r] = (pos, p, ins.dst, ins.mn); valu_w.pop(r, None); trans_w.pop(r, None)
                for r in ins.srcC: mfma_c[r] = (pos, p)
            elif k in ("vmem", "ds"):
                for r in vd:
                    valu_w.pop(r, None); trans_w.pop(r, None); mfma_w.pop(r, None)
                if ins.is_store and ("x4" in ins.mn or "x3" in ins.mn):
                    for r in vs: store_d[r] = pos
            elif k in ("salu", "smem"):
                for r in ins.dst:
                    valu_sw.pop(r, None)
                    if r == ("m0", 0): m0_w = pos
            pos += ins.n
        return need
    def fix_hazards(self, verbose=False):
        total = 0
        for _ in range(50):
            need = self._hazard_scan()
            if not need: break
            for idx in sorted(need, reverse=True):
                d = need[idx]; total += d
                self.items.insert(idx, Ins(f"s_nop {d-1}", auto=True))
        if verbose: print("hazard nops inserted (wait states):", total)
        return total
    def verify_waits(self):
        errs = []
        vm = []
        lg = []
        def pend(q):
            s = set()
            for e in q: s |= e[1]
            return s
        for idx in self.trace():
            ins = self.items[idx]
            if ins.mn == "s_waitcnt":
                m = re.search(r"vmcnt\((\d+)\)", ins.text)
                if m:
                    n = int(m.group(1))
                    while len(vm) > n: vm.pop(0)
                m = re.search(r"lgkmcnt\((\d+)\)", ins.text)
                if m:
                    n = int(m.group(1))
                    if any(e[2] for e in lg) and n != 0:
                        errs.append(f"[{idx}] counted lgkmcnt with SMEM outstanding: {ins.text}")
                    while len(lg) > n: lg.pop(0)
                continue
            touched = {r for r in (ins.src | ins.dst)}
            bad = touched & pend(vm)
            if bad: errs.append(f"[{idx}] {ins.text}  touches regs of outstanding VMEM load: {sorted(bad)[:4]}")
            bad = touched & pend(lg)
            if bad: errs.append(f"[{idx}] {ins.text}  touches regs of outstanding LGKM op: {sorted(bad)[:4]}")
            if ins.kind == "vmem":
                vm.append((idx, set(ins.dst)))
                if len(vm) > 63: errs.append(f"[{idx}] more than 63 vmem outstanding")
            elif ins.kind == "ds":
                lg.append((idx, set(ins.dst), False))
            elif ins.kind == "smem":
                lg.append((idx, set(ins.dst), True))
        return errs
    def text(self):
        out = []
        for it in self.items:
            if isinstance(it, Ins): out.append("    " + it.text)
            elif it[0] == "label": out.append(it[1] + ":")
            elif it[0] == "comment": out.append("    " + it[1])
        return "\n".join(out) + "\n"
    def count(self):
        tr = self.trace()
        return len([i for i in self.items if isinstance(i, Ins)]), len(tr)

def stamp_begin(a, slot=0):
    a("s_memrealtime s[90:91]")
    a("s_waitcnt lgkmcnt(0)")
def stamp_mark(a, k):
    a(f"s_memrealtime s[{92+2*k}:{93+2*k}]")
    a("s_waitcnt lgkmcnt(0)")
def stamp_end(a, sWave, vb=200):
    a(f"""
    s_waitcnt vmcnt(0) lgkmcnt(0)
    s_memrealtime s[92:93]
    s_load_dwordx2 s[88:89], s[0:1], 48
    s_waitcnt lgkmcnt(0)
    s_lshl_b32 s86, s2, 4
    s_add_u32 s86, s86, s{sWave}
    s_lshl_b32 s86, s86, 5
    v_mov_b32 v{vb+0}, s90
    v_mov_b32 v{vb+1}, s91
    v_mov_b32 v{vb+2}, s92
    v_mov_b32 v{vb+3}, s93
    v_mov_b32 v{vb+4}, s94
    v_mov_b32 v{vb+5}, s95
    v_mov_b32 v{vb+6}, s96
    v_mov_b32 v{vb+7}, s97
    v_mov_b32 v{vb+8}, s86
    v_cmp_eq_u32 vcc, 0, v1
    s_nop 4
    s_and_saveexec_b64 s[84:85], vcc
    global_store_dwordx4 v{vb+8}, v[{vb}:{vb+3}], s[88:89]
    global_store_dwordx4 v{vb+8}, v[{vb+4}:{vb+7}], s[88:89] offset:16
    s_waitcnt vmcnt(0)
    s_mov_b64 exec, s[84:85]
    """)
```

```python
from gasm import *

D = 4
SLOT = 24576
KBASE = D * SLOT
VBASE = KBASE + 16384
K1_LDS = VBASE + 16384
XCH = 0
QBASE = 32768
NST = 16

def gen_k1(name="k1", stamp=False, rot=True, dbg_dump=None):
    a = Asm()
    SRD_X, SRD_WQ, SRD_K, SRD_V, SRD_WS = 16, 20, 24, 28, 32
    (sW, sB, sH, sRot, sStage, sOffW, sOffX, sBaseW, sBaseX, sLW, sLX, sCnt, sT0, sT1, sT2, sT3,
     sKV, sScale, sLog2e, sG, sDW, sOffW2) = range(36, 58)
    vLane = 1
    vDWq, vDX = 2, 3
    vA0, vA1 = 4, 7
    vB = {(0, 0, 0): 5, (0, 0, 1): 6, (0, 1, 0): 8, (0, 1, 1): 9,
          (1, 0, 0): 10, (1, 0, 1): 11, (1, 1, 0): 12, (1, 1, 1): 13}
    vT = [14, 15, 240, 241, 242, 243, 244, 245]
    AF = 16
    BF = 24
    ACC = 40
    def af(tt, i=None):
        b = AF + 4 * tt
        return f"v[{b}:{b+3}]" if i is None else f"v[{b+2*i}:{b+2*i+1}]"
    def bf(tt, idx): b = BF + 8 * tt + 4 * idx; return f"v[{b}:{b+3}]"
    def acc(idx): return f"v[{ACC+16*idx}:{ACC+16*idx+15}]"

    if stamp: stamp_begin(a)
    a(f"""
    s_cmp_ge_u32 s2, 256
    s_cbranch_scc1 {name}_END
    s_load_dwordx8 s[4:11], s[0:1], 0
    s_load_dwordx2 s[12:13], s[0:1], 56
    v_and_b32 v{vLane}, 63, v0
    v_lshrrev_b32 v{vT[0]}, 6, v0
    v_readfirstlane_b32 s{sW}, v{vT[0]}
    s_and_b32 s{sT0}, s2, 7
    s_lshl_b32 s{sT0}, s{sT0}, 2
    s_bfe_u32 s{sT1}, s2, 0x20003
    s_add_u32 s{sH}, s{sT0}, s{sT1}
    s_lshr_b32 s{sB}, s2, 5
    s_and_b32 s{sDW}, s{sW}, 3
    s_lshr_b32 s{sG}, s{sW}, 2
    s_and_b32 s{sT0}, s{sH}, 3
    s_lshl_b32 s{sT0}, s{sT0}, 1
    s_add_u32 s{sT0}, s{sT0}, s{sB}
    s_lshl_b32 s{sT0}, s{sT0}, 1
    s_and_b32 s{sRot}, s{sT0}, 15
    s_mov_b32 s{sStage}, 0
    s_lshl_b32 s{sBaseW}, s{sH}, 8
    s_lshl_b32 s{sBaseX}, s{sB}, 17
    s_lshl_b32 s{sLW}, s{sW}, 11
    s_lshl_b32 s{sLX}, s{sW}, 10
    s_add_u32 s{sLX}, s{sLX}, 16384
    s_lshl_b32 s{sT0}, s{sB}, 5
    s_add_u32 s{sT0}, s{sT0}, s{sH}
    s_lshl_b32 s{sKV}, s{sT0}, 14
    """)
    if not rot: a(f"s_mov_b32 s{sRot}, 0")
    t0, t1, t2, t3 = vT[0], vT[1], vT[2], vT[3]
    a(f"""
    v_lshrrev_b32 v{t0}, 4, v{vLane}
    v_and_b32 v{t1}, 15, v{vLane}
    v_lshlrev_b32 v{t2}, 2, v{t0}
    v_xor_b32 v{t1}, v{t1}, v{t2}
    v_lshlrev_b32 v{vDWq}, 13, v{t0}
    v_lshl_add_u32 v{vDWq}, v{t1}, 4, v{vDWq}
    s_lshl_b32 s{sT0}, s{sW}, 16
    v_add_u32 v{vDWq}, s{sT0}, v{vDWq}
    v_lshrrev_b32 v{t1}, 3, v{vLane}
    v_and_b32 v{t2}, 7, v{vLane}
    v_xor_b32 v{t2}, v{t2}, v{t0}
    s_and_b32 s{sT0}, s{sW}, 1
    s_lshl_b32 s{sT0}, s{sT0}, 2
    v_xor_b32 v{t2}, s{sT0}, v{t2}
    v_lshlrev_b32 v{vDX}, 11, v{t1}
    v_lshl_add_u32 v{vDX}, v{t2}, 4, v{vDX}
    s_lshl_b32 s{sT0}, s{sW}, 14
    v_add_u32 v{vDX}, s{sT0}, v{vDX}
    v_lshrrev_b32 v{t0}, 5, v{vLane}
    v_lshlrev_b32 v{vA0}, 11, v{t0}
    v_bfe_u32 v{t0}, v{vLane}, 2, 2
    v_lshl_add_u32 v{vA0}, v{t0}, 8, v{vA0}
    v_xor_b32 v{t0}, s{sDW}, v{t0}
    v_lshl_add_u32 v{vA0}, v{t0}, 6, v{vA0}
    v_bfe_u32 v{t0}, v{vLane}, 4, 1
    v_lshl_add_u32 v{vA0}, v{t0}, 5, v{vA0}
    v_and_b32 v{t0}, 3, v{vLane}
    v_lshl_add_u32 v{vA0}, v{t0}, 3, v{vA0}
    s_lshl_b32 s{sT0}, s{sG}, 13
    v_add_u32 v{vA0}, s{sT0}, v{vA0}
    v_add_u32 v{vA1}, 49152, v{vA0}
    v_and_b32 v{t0}, 31, v{vLane}
    v_lshlrev_b32 v{t0}, 7, v{t0}
    v_lshrrev_b32 v{t1}, 5, v{vLane}
    v_bfe_u32 v{t2}, v{vLane}, 1, 3
    v_xor_b32 v{t1}, v{t1}, v{t2}
    s_lshl_b32 s{sT0}, s{sG}, 2
    v_xor_b32 v{t1}, s{sT0}, v{t1}
    v_lshl_add_u32 v{t0}, v{t1}, 4, v{t0}
    s_lshl_b32 s{sT0}, s{sG}, 12
    v_add_u32 v{vB[(0,0,0)]}, s{sT0}, v{t0}
    v_xor_b32 v{vB[(1,0,0)]}, 32, v{vB[(0,0,0)]}
    v_xor_b32 v{vB[(0,1,0)]}, 4096, v{vB[(0,0,0)]}
    v_xor_b32 v{vB[(1,1,0)]}, 4096, v{vB[(1,0,0)]}
    """)
    for tt in range(2):
        for idx in range(2):
            a(f"v_add_u32 v{vB[(tt,idx,1)]}, 49152, v{vB[(tt,idx,0)]}")
    for i in range(32):
        a(f"v_mov_b32 v{ACC+i}, 0")
    a(f"""
    s_waitcnt lgkmcnt(0)
    s_mov_b32 s{SRD_X}, s4
    s_and_b32 s{SRD_X+1}, s5, 0xffff
    s_mov_b32 s{SRD_X+2}, 0x100000
    s_mov_b32 s{SRD_X+3}, 0x00020000
    s_mov_b32 s{SRD_WQ}, s10
    s_and_b32 s{SRD_WQ+1}, s11, 0xffff
    s_mov_b32 s{SRD_WQ+2}, 0x800000
    s_mov_b32 s{SRD_WQ+3}, 0x00020000
    """)
    def issue(slot):
        sb = slot * SLOT
        a(f"""
        s_add_u32 s{sT0}, s{sStage}, s{sRot}
        s_and_b32 s{sT0}, s{sT0}, 15
        s_lshl_b32 s{sT1}, s{sT0}, 19
        s_add_u32 s{sOffW}, s{sBaseW}, s{sT1}
        s_add_u32 m0, s{sLW}, {sb}
        s_lshl_b32 s{sT3}, s{sT0}, 7
        buffer_load_dwordx4 v{vDWq}, s[{SRD_WQ}:{SRD_WQ+3}], s{sOffW} offen lds
        s_add_u32 s{sOffW2}, s{sOffW}, 32768
        s_add_u32 m0, s{sLW}, {sb + 1024}
        s_add_u32 s{sOffX}, s{sBaseX}, s{sT3}
        buffer_load_dwordx4 v{vDWq}, s[{SRD_WQ}:{SRD_WQ+3}], s{sOffW2} offen lds
        s_add_u32 m0, s{sLX}, {sb}
        s_add_u32 s{sStage}, s{sStage}, 1
        buffer_load_dwordx4 v{vDX}, s[{SRD_X}:{SRD_X+3}], s{sOffX} offen lds
        """)
    for s in range(D - 1): issue(s)
    a(f"""
    s_mov_b32 s{SRD_K}, s6
    s_and_b32 s{SRD_K+1}, s7, 0xffff
    s_mov_b32 s{SRD_K+2}, 0x400000
    s_mov_b32 s{SRD_K+3}, 0x00020000
    s_mov_b32 s{SRD_V}, s8
    s_and_b32 s{SRD_V+1}, s9, 0xffff
    s_mov_b32 s{SRD_V+2}, 0x400000
    s_mov_b32 s{SRD_V+3}, 0x00020000
    s_mov_b32 s{SRD_WS}, s12
    s_and_b32 s{SRD_WS+1}, s13, 0xffff
    s_mov_b32 s{SRD_WS+2}, 0x400000
    s_mov_b32 s{SRD_WS+3}, 0x00020000
    v_lshrrev_b32 v{t0}, 4, v{vLane}
    v_and_b32 v{t1}, 15, v{vLane}
    v_lshlrev_b32 v{t2}, 8, v{t0}
    s_lshl_b32 s{sT0}, s{sW}, 11
    v_add_u32 v{t2}, s{sT0}, v{t2}
    v_xor_b32 v{t3}, v{t1}, v{t0}
    s_and_b32 s{sT0}, s{sW}, 1
    s_lshl_b32 s{sT0}, s{sT0}, 3
    v_xor_b32 v{t3}, s{sT0}, v{t3}
    v_lshl_add_u32 v{vT[4]}, v{t3}, 4, v{t2}
    v_xor_b32 v{t3}, 4, v{t3}
    v_lshl_add_u32 v{vT[5]}, v{t3}, 4, v{t2}
    v_add_u32 v{vT[5]}, 1024, v{vT[5]}
    v_lshlrev_b32 v{t3}, 1, v{t0}
    v_xor_b32 v{t3}, v{t1}, v{t3}
    v_lshl_add_u32 v{vT[6]}, v{t3}, 4, v{t2}
    v_xor_b32 v{t3}, 8, v{t3}
    v_lshl_add_u32 v{vT[7]}, v{t3}, 4, v{t2}
    v_add_u32 v{vT[7]}, 1024, v{vT[7]}
    s_add_u32 m0, s{sLW}, {KBASE}
    s_nop 0
    buffer_load_dwordx4 v{vT[4]}, s[{SRD_K}:{SRD_K+3}], s{sKV} offen lds
    s_add_u32 m0, s{sLW}, {KBASE + 1024}
    s_nop 0
    buffer_load_dwordx4 v{vT[5]}, s[{SRD_K}:{SRD_K+3}], s{sKV} offen lds
    s_add_u32 m0, s{sLW}, {VBASE}
    s_nop 0
    buffer_load_dwordx4 v{vT[6]}, s[{SRD_V}:{SRD_V+3}], s{sKV} offen lds
    s_add_u32 m0, s{sLW}, {VBASE + 1024}
    s_nop 0
    buffer_load_dwordx4 v{vT[7]}, s[{SRD_V}:{SRD_V+3}], s{sKV} offen lds
    s_mov_b32 s{sCnt}, {NST // D}
    """)
    if stamp: a("s_waitcnt vmcnt(0)"); stamp_mark(a, 1)
    a.label(f"{name}_LOOP")
    a.loop_begin("L", NST // D)
    for sl in range(D):
        win = sl >> 1; so = (sl & 1) * SLOT
        vA = vA0 if win == 0 else vA1
        a(f"s_waitcnt vmcnt({3*(D-2)})")
        a("s_barrier")
        for tt in range(2):
            a(f"ds_read_b64_tr_b16 {af(tt,0)}, v{vA} offset:{so + tt*4096}")
            a(f"ds_read_b64_tr_b16 {af(tt,1)}, v{vA} offset:{so + tt*4096 + 1024}")
            a(f"ds_read_b128 {bf(tt,0)}, v{vB[(tt,0,win)]} offset:{so + 16384}")
            a(f"ds_read_b128 {bf(tt,1)}, v{vB[(tt,1,win)]} offset:{so + 16384}")
        if sl == 1:
            a(f"""
            s_add_u32 s{sT2}, s{sLW}, 0x28000
            s_add_u32 s{sT3}, s{sLX}, 0x28000
            s_cmp_eq_u32 s{sCnt}, 1
            s_cselect_b32 s{SRD_WQ+2}, 0, s{SRD_WQ+2}
            s_cselect_b32 s{SRD_X+2}, 0, s{SRD_X+2}
            s_cselect_b32 s{sLW}, s{sT2}, s{sLW}
            s_cselect_b32 s{sLX}, s{sT3}, s{sLX}
            """)
        issue((sl + D - 1) % D)
        a("s_waitcnt lgkmcnt(4)")
        for idx in range(2):
            a(f"v_mfma_f32_32x32x16_bf16 {acc(idx)}, {af(0)}, {bf(0,idx)}, {acc(idx)}")
        a("s_waitcnt lgkmcnt(0)")
        for idx in range(2):
            a(f"v_mfma_f32_32x32x16_bf16 {acc(idx)}, {af(1)}, {bf(1,idx)}, {acc(idx)}")
    a(f"""
    s_sub_u32 s{sCnt}, s{sCnt}, 1
    s_cmp_lg_u32 s{sCnt}, 0
    s_cbranch_scc1 {name}_LOOP
    """)
    a.loop_end("L")
    if stamp: stamp_mark(a, 2)
    vX = vT[0]
    a(f"""
    s_waitcnt vmcnt(0)
    v_lshlrev_b32 v{vX}, 4, v{vLane}
    s_lshl_b32 s{sT0}, s{sW}, 12
    v_add_u32 v{vT[1]}, s{sT0}, v{vX}
    """)
    for qd in range(4):
        a(f"ds_write_b128 v{vT[1]}, v[{ACC+16+4*qd}:{ACC+16+4*qd+3}] offset:{XCH + qd*1024}")
    a(f"""
    s_xor_b32 s{sT0}, s{sW}, 4
    s_lshl_b32 s{sT0}, s{sT0}, 12
    v_add_u32 v{vT[1]}, s{sT0}, v{vX}
    s_waitcnt lgkmcnt(0)
    s_barrier
    """)
    for qd in range(4):
        a(f"ds_read_b128 v[{ACC+16+4*qd}:{ACC+16+4*qd+3}], v{vT[1]} offset:{XCH + qd*1024}")
    a(f"""
    v_and_b32 v{vT[2]}, 31, v{vLane}
    v_lshlrev_b32 v{vT[2]}, 8, v{vT[2]}
    s_lshl_b32 s{sT0}, s{sG}, 13
    v_add_u32 v{vT[2]}, s{sT0}, v{vT[2]}
    v_and_b32 v{vT[3]}, 15, v{vLane}
    s_lshl_b32 s{sT0}, s{sDW}, 2
    v_xor_b32 v{vT[3]}, s{sT0}, v{vT[3]}
    v_lshl_add_u32 v{vT[2]}, v{vT[3]}, 4, v{vT[2]}
    v_lshrrev_b32 v{vT[3]}, 5, v{vLane}
    v_lshl_add_u32 v{vT[2]}, v{vT[3]}, 3, v{vT[2]}
    v_xor_b32 v{vT[3]}, 16, v{vT[2]}
    v_xor_b32 v{vT[4]}, 32, v{vT[2]}
    v_xor_b32 v{vT[5]}, 48, v{vT[2]}
    s_waitcnt lgkmcnt(0)
    """)
    for i in range(16):
        a(f"v_add_f32 v{ACC+i}, v{ACC+i}, v{ACC+16+i}")
    for i in range(8):
        a(f"v_cvt_pk_bf16_f32 v{ACC+16+i}, v{ACC+2*i}, v{ACC+2*i+1}")
    for aq in range(4):
        a(f"ds_write_b64 v{vT[2+aq]}, v[{ACC+16+2*aq}:{ACC+16+2*aq+1}] offset:{QBASE}")
    a("""
    s_waitcnt lgkmcnt(0)
    s_barrier
    """)
    QF, KF, SA, VF, PB, OA = 72, 88, 152, 168, 200, 208
    vKQ = [224, 225, 226, 227]; vQa = [228, 229, 230, 231]; vVb = [232, 233, 234, 235]
    vM, vS, vTm, vSt = 236, 237, 238, 239
    def qf(ks): return f"v[{QF+4*ks}:{QF+4*ks+3}]"
    def kf(kb, ks): b = KF + 16 * kb + 4 * ks; return f"v[{b}:{b+3}]"
    def sa(kb): return f"v[{SA+4*kb}:{SA+4*kb+3}]"
    def vf(dd, j2, i=None):
        b = VF + 8 * dd + 4 * j2
        return f"v[{b}:{b+3}]" if i is None else f"v[{b+2*i}:{b+2*i+1}]"
    def pb(j2): return f"v[{PB+4*j2}:{PB+4*j2+3}]"
    def oa(dd): return f"v[{OA+4*dd}:{OA+4*dd+3}]"
    a(f"""
    v_and_b32 v{t0}, 15, v{vLane}
    v_lshrrev_b32 v{t1}, 4, v{vLane}
    v_xor_b32 v{t1}, v{t1}, v{t0}
    v_lshlrev_b32 v{t0}, 8, v{t0}
    v_lshl_add_u32 v{t0}, v{t1}, 4, v{t0}
    v_add_u32 v{vKQ[0]}, {KBASE}, v{t0}
    v_xor_b32 v{vKQ[1]}, 64, v{vKQ[0]}
    v_xor_b32 v{vKQ[2]}, 128, v{vKQ[0]}
    v_xor_b32 v{vKQ[3]}, 192, v{vKQ[0]}
    s_lshl_b32 s{sT0}, s{sDW}, 12
    s_add_u32 s{sT0}, s{sT0}, {QBASE}
    v_add_u32 v{vQa[0]}, s{sT0}, v{t0}
    v_xor_b32 v{vQa[1]}, 64, v{vQa[0]}
    v_xor_b32 v{vQa[2]}, 128, v{vQa[0]}
    v_xor_b32 v{vQa[3]}, 192, v{vQa[0]}
    """)
    for ks in range(4):
        a(f"ds_read_b128 {qf(ks)}, v{vQa[ks]}")
    for kb in range(2):
        for ks in range(4):
            a(f"ds_read_b128 {kf(kb,ks)}, v{vKQ[ks]} offset:{kb*4096}")
    a(f"""
    v_lshrrev_b32 v{t0}, 2, v{vLane}
    v_lshlrev_b32 v{t1}, 8, v{t0}
    v_bfe_u32 v{t2}, v{vLane}, 4, 1
    v_lshlrev_b32 v{t2}, 3, v{t2}
    v_bfe_u32 v{t3}, v{vLane}, 2, 2
    v_lshl_add_u32 v{t2}, v{t3}, 1, v{t2}
    v_lshl_add_u32 v{t1}, v{t2}, 4, v{t1}
    v_and_b32 v{t3}, 3, v{vLane}
    v_lshl_add_u32 v{t1}, v{t3}, 3, v{t1}
    s_lshl_b32 s{sT0}, s{sG}, 7
    v_xor_b32 v{t1}, s{sT0}, v{t1}
    v_add_u32 v{vVb[0]}, {VBASE}, v{t1}
    v_xor_b32 v{vVb[1]}, 32, v{vVb[0]}
    v_xor_b32 v{vVb[2]}, 64, v{vVb[0]}
    v_xor_b32 v{vVb[3]}, 96, v{vVb[0]}
    """)
    def mfma_s(kb, ks, first):
        c = "0" if first else sa(kb)
        a(f"v_mfma_f32_16x16x32_bf16 {sa(kb)}, {kf(kb,ks)}, {qf(ks)}, {c}")
    a("s_waitcnt lgkmcnt(4)")
    for ks in range(4): mfma_s(0, ks, ks == 0)
    for ks in range(4):
        a(f"ds_read_b128 {kf(2,ks)}, v{vKQ[ks]} offset:{2*4096}")
    a("s_waitcnt lgkmcnt(4)")
    for ks in range(4): mfma_s(1, ks, ks == 0)
    for ks in range(4):
        a(f"ds_read_b128 {kf(3,ks)}, v{vKQ[ks]} offset:{3*4096}")
    a("s_waitcnt lgkmcnt(4)")
    for ks in range(4): mfma_s(2, ks, ks == 0)
    for dd in range(2):
        for j2 in range(2):
            for i in range(2):
                a(f"ds_read_b64_tr_b16 {vf(dd,j2,i)}, v{vVb[dd]} offset:{j2*8192 + i*4096}")
    a("s_waitcnt lgkmcnt(8)")
    for ks in range(4): mfma_s(3, ks, ks == 0)
    a(f"""
    v_and_b32 v{t0}, 15, v{vLane}
    v_lshrrev_b32 v{t1}, 5, v{vLane}
    v_lshl_add_u32 v{t0}, v{t1}, 5, v{t0}
    v_lshlrev_b32 v{vSt}, 4, v{t0}
    v_bfe_u32 v{t1}, v{vLane}, 4, 1
    v_lshl_add_u32 v{vSt}, v{t1}, 3, v{vSt}
    s_and_b32 s{sT0}, s{sDW}, 1
    s_lshl_b32 s{sT0}, s{sT0}, 8
    v_add_u32 v{vSt}, s{sT0}, v{vSt}
    s_lshl_b32 s{sT0}, s{sB}, 1
    s_lshr_b32 s{sT1}, s{sDW}, 1
    s_add_u32 s{sT0}, s{sT0}, s{sT1}
    s_lshl_b32 s{sT0}, s{sT0}, 8
    s_lshl_b32 s{sT1}, s{sH}, 3
    s_add_u32 s{sT0}, s{sT0}, s{sT1}
    s_lshl_b32 s{sT1}, s{sG}, 2
    s_add_u32 s{sT0}, s{sT0}, s{sT1}
    s_lshl_b32 s{sT2}, s{sT0}, 10
    s_mov_b32 s{sScale}, 0x3db504f3
    s_mov_b32 s{sLog2e}, 0x3fb8aa3b
    """)
    for kb in range(4):
        S = [SA + 4 * kb + r for r in range(4)]
        a(f"""
        v_cvt_pk_bf16_f32 v{t0}, v{S[0]}, v{S[1]}
        v_cvt_pk_bf16_f32 v{t1}, v{S[2]}, v{S[3]}
        v_lshlrev_b32 v{S[0]}, 16, v{t0}
        v_and_b32 v{S[1]}, 0xffff0000, v{t0}
        v_lshlrev_b32 v{S[2]}, 16, v{t1}
        v_and_b32 v{S[3]}, 0xffff0000, v{t1}
        v_mul_f32 v{S[0]}, s{sScale}, v{S[0]}
        v_mul_f32 v{S[1]}, s{sScale}, v{S[1]}
        v_mul_f32 v{S[2]}, s{sScale}, v{S[2]}
        v_mul_f32 v{S[3]}, s{sScale}, v{S[3]}
        v_cvt_pk_bf16_f32 v{t0}, v{S[0]}, v{S[1]}
        v_cvt_pk_bf16_f32 v{t1}, v{S[2]}, v{S[3]}
        v_lshlrev_b32 v{S[0]}, 16, v{t0}
        v_and_b32 v{S[1]}, 0xffff0000, v{t0}
        v_lshlrev_b32 v{S[2]}, 16, v{t1}
        v_and_b32 v{S[3]}, 0xffff0000, v{t1}
        """)
    a(f"v_max3_f32 v{vM}, v{SA}, v{SA+1}, v{SA+2}")
    for i in range(3, 15, 2):
        a(f"v_max3_f32 v{vM}, v{vM}, v{SA+i}, v{SA+i+1}")
    a(f"v_max_f32 v{vM}, v{vM}, v{SA+15}")
    for sw in ("v_permlane16_swap_b32", "v_permlane32_swap_b32"):
        a(f"""
        v_mov_b32 v{vTm}, v{vM}
        {sw} v{vM}, v{vTm}
        v_max_f32 v{vM}, v{vM}, v{vTm}
        """)
    a(f"v_mul_f32 v{vM}, s{sLog2e}, v{vM}")
    for i in range(16):
        a(f"v_fma_f32 v{SA+i}, v{SA+i}, s{sLog2e}, -v{vM}")
    for i in range(16):
        a(f"v_exp_f32 v{SA+i}, v{SA+i}")
    for dd in range(2, 4):
        for j2 in range(2):
            for i in range(2):
                a(f"ds_read_b64_tr_b16 {vf(dd,j2,i)}, v{vVb[dd]} offset:{j2*8192 + i*4096}")
    a(f"v_add_f32 v{vS}, v{SA}, v{SA+1}")
    for i in range(2, 16):
        a(f"v_add_f32 v{vS}, v{vS}, v{SA+i}")
    for sw in ("v_permlane16_swap_b32", "v_permlane32_swap_b32"):
        a(f"""
        v_mov_b32 v{vTm}, v{vS}
        {sw} v{vS}, v{vTm}
        v_add_f32 v{vS}, v{vS}, v{vTm}
        """)
    a(f"v_rcp_f32 v{vS}, v{vS}")
    for i in range(16):
        a(f"v_mul_f32 v{SA+i}, v{SA+i}, v{vS}")
    for i in range(8):
        a(f"v_cvt_pk_bf16_f32 v{PB+i}, v{SA+2*i}, v{SA+2*i+1}")
    a("s_waitcnt lgkmcnt(0)")
    for dd in range(4):
        a(f"v_mfma_f32_16x16x32_bf16 {oa(dd)}, {vf(dd,0)}, {pb(0)}, 0")
    for dd in range(4):
        a(f"v_mfma_f32_16x16x32_bf16 {oa(dd)}, {vf(dd,1)}, {pb(1)}, {oa(dd)}")
    for dd in range(4):
        a(f"v_cvt_pk_bf16_f32 v{SA+2*dd}, v{OA+4*dd}, v{OA+4*dd+1}")
        a(f"v_cvt_pk_bf16_f32 v{SA+2*dd+1}, v{OA+4*dd+2}, v{OA+4*dd+3}")
        a(f"buffer_store_dwordx2 v[{SA+2*dd}:{SA+2*dd+1}], v{vSt}, s[{SRD_WS}:{SRD_WS+3}], s{sT2} offen offset:{dd*1024}")
    if stamp: stamp_end(a, sW)
    a.label(f"{name}_END")
    a("s_endpgm")
    return a

if __name__ == "__main__":
    a = gen_k1()
    a.fix_hazards(True)
    errs = a.verify_waits()
    print("wait errors:", len(errs)); [print(e) for e in errs[:30]]
    print("static/dynamic instruction counts:", a.count())
    open("k1_body.s", "w").write(a.text())
```

```python
from gasm import *

def k2_lds(NWV=8, P=8): return NWV * max(P * 2048, 8192)

def gen_k2(name="k2", stamp=False, NWV=8, P=8, rot=True, no_compute=False, G=1):
    a = Asm()
    NSTEP = 256 // NWV
    KROWS = 4096 // NWV
    WAVE_LDS = max(P * 2048, 8192)
    sWO, sWS, sOUT = 4, 6, 8
    SRD_W, SRD_O, SRD_OUT = 12, 16, 20
    sWV, sMT, sNT, sOffW, sOffO, sLB, sCnt, sT0, sT1, sK, sBaseW, sBaseO, sRot, sT2 = range(24, 38)
    GS = NSTEP // G
    vLane, vVoffW, vVoffO, vWa0, vWa1, vT1, vT2, vT3, vT4, vRed, vOutA = 1, 2, 3, 4, 5, 6, 7, 8, 9, 10, 11
    ACC = 64
    WF = 96
    ORING = 128
    def acc(nb): return f"v[{ACC+16*nb}:{ACC+16*nb+15}]"
    def wf(buf, nb, i=None):
        b = WF + buf * 8 + nb * 4
        return f"v[{b}:{b+3}]" if i is None else f"v[{b+2*i}:{b+2*i+1}]"
    def oreg(slot): return f"v[{ORING+4*slot}:{ORING+4*slot+3}]"

    if stamp: stamp_begin(a)
    a(f"""
    s_cmp_ge_u32 s2, 256
    s_cbranch_scc1 {name}_END
    s_load_dwordx2 s[{sWO}:{sWO+1}], s[0:1], 32
    s_load_dwordx2 s[{sWS}:{sWS+1}], s[0:1], 56
    s_load_dwordx2 s[{sOUT}:{sOUT+1}], s[0:1], 40
    v_and_b32 v{vLane}, 63, v0
    v_lshrrev_b32 v{vT1}, 6, v0
    v_readfirstlane_b32 s{sWV}, v{vT1}
    s_and_b32 s{sT0}, s2, 1
    s_lshl_b32 s{sT0}, s{sT0}, 3
    s_bfe_u32 s{sT1}, s2, 0x30003
    s_add_u32 s{sMT}, s{sT0}, s{sT1}
    s_bfe_u32 s{sT0}, s2, 0x20001
    s_lshl_b32 s{sT0}, s{sT0}, 2
    s_lshr_b32 s{sT1}, s2, 6
    s_add_u32 s{sNT}, s{sT0}, s{sT1}
    v_lshrrev_b32 v{vT1}, 4, v{vLane}
    v_bfe_u32 v{vT2}, v{vLane}, 3, 1
    v_lshl_add_u32 v{vT2}, v{vT1}, 1, v{vT2}
    v_bfe_u32 v{vT3}, v{vLane}, 2, 1
    v_and_b32 v{vT4}, 1, v{vT1}
    v_xor_b32 v{vT3}, v{vT3}, v{vT4}
    v_and_b32 v{vT4}, 3, v{vLane}
    v_lshlrev_b32 v{vVoffW}, 11, v{vT2}
    v_lshl_add_u32 v{vVoffW}, v{vT3}, 6, v{vVoffW}
    v_lshl_add_u32 v{vVoffW}, v{vT4}, 4, v{vVoffW}
    v_lshlrev_b32 v{vVoffO}, 4, v{vLane}
    v_bfe_u32 v{vT1}, v{vLane}, 5, 1
    v_lshlrev_b32 v{vWa0}, 10, v{vT1}
    v_bfe_u32 v{vT1}, v{vLane}, 3, 1
    v_lshl_add_u32 v{vWa0}, v{vT1}, 8, v{vWa0}
    v_lshl_add_u32 v{vWa0}, v{vT1}, 6, v{vWa0}
    v_bfe_u32 v{vT1}, v{vLane}, 2, 1
    v_lshl_add_u32 v{vWa0}, v{vT1}, 7, v{vWa0}
    v_bfe_u32 v{vT1}, v{vLane}, 4, 1
    v_lshl_add_u32 v{vWa0}, v{vT1}, 5, v{vWa0}
    v_and_b32 v{vT1}, 3, v{vLane}
    v_lshl_add_u32 v{vWa0}, v{vT1}, 3, v{vWa0}
    s_mul_i32 s{sLB}, s{sWV}, {WAVE_LDS}
    v_add_u32 v{vWa0}, s{sLB}, v{vWa0}
    v_xor_b32 v{vWa1}, 64, v{vWa0}
    s_and_b32 s{sT0}, s{sMT}, 7
    s_and_b32 s{sT1}, s{sNT}, 3
    s_lshl_b32 s{sT1}, s{sT1}, 1
    s_add_u32 s{sT0}, s{sT0}, s{sT1}
    s_mul_i32 s{sRot}, s{sT0}, {GS // 8}
    s_and_b32 s{sRot}, s{sRot}, {GS - 1}
    s_mov_b32 s{sK}, 0
    """)
    if not rot: a(f"s_mov_b32 s{sRot}, 0")
    for i in range(32):
        a(f"v_mov_b32 v{ACC+i}, 0")
    a(f"""
    s_waitcnt lgkmcnt(0)
    s_mov_b32 s{SRD_W}, s{sWO}
    s_and_b32 s{SRD_W+1}, s{sWO+1}, 0xffff
    s_mov_b32 s{SRD_W+2}, 0x800000
    s_mov_b32 s{SRD_W+3}, 0x00020000
    s_mul_i32 s{sBaseW}, s{sWV}, {KROWS*2048}
    s_lshl_b32 s{sT0}, s{sNT}, 7
    s_add_u32 s{sBaseW}, s{sBaseW}, s{sT0}
    s_lshl_b32 s{sT0}, s{sMT}, 18
    s_mul_i32 s{sT1}, s{sWV}, {NSTEP*1024}
    s_add_u32 s{sBaseO}, s{sT0}, s{sT1}
    s_mov_b32 s{SRD_O}, s{sWS}
    s_and_b32 s{SRD_O+1}, s{sWS+1}, 0xffff
    s_mov_b32 s{SRD_O+2}, 0x400000
    s_mov_b32 s{SRD_O+3}, 0x00020000
    s_mov_b32 s{SRD_OUT}, s{sOUT}
    s_and_b32 s{SRD_OUT+1}, s{sOUT+1}, 0xffff
    s_mov_b32 s{SRD_OUT+2}, 0x100000
    s_mov_b32 s{SRD_OUT+3}, 0x00020000
    """)
    def issue(slot):
        a(f"""
        s_add_u32 s{sT2}, s{sK}, s{sRot}
        s_and_b32 s{sT2}, s{sT2}, {GS-1}
        s_and_b32 s{sT0}, s{sK}, {(NSTEP-1) & ~(GS-1)}
        s_or_b32 s{sT2}, s{sT2}, s{sT0}
        s_lshl_b32 s{sT0}, s{sT2}, 15
        s_add_u32 s{sOffW}, s{sBaseW}, s{sT0}
        s_lshl_b32 s{sT1}, s{sT2}, 10
        s_add_u32 s{sOffO}, s{sBaseO}, s{sT1}
        s_add_u32 m0, s{sLB}, {slot*2048}
        buffer_load_dwordx4 {oreg(slot)}, v{vVoffO}, s[{SRD_O}:{SRD_O+3}], s{sOffO} offen
        buffer_load_dwordx4 v{vVoffW}, s[{SRD_W}:{SRD_W+3}], s{sOffW} offen lds
        s_add_u32 s{sOffW}, s{sOffW}, 16384
        s_add_u32 m0, s{sLB}, {slot*2048+1024}
        s_add_u32 s{sK}, s{sK}, 1
        buffer_load_dwordx4 v{vVoffW}, s[{SRD_W}:{SRD_W+3}], s{sOffW} offen lds
        """)
    def trread(slot, buf):
        for nb in range(2):
            for i in range(2):
                a(f"ds_read_b64_tr_b16 {wf(buf, nb, i)}, v{vWa0 if nb == 0 else vWa1} offset:{slot*2048 + i*512}")
    for s in range(P - 1): issue(s)
    a(f"s_waitcnt vmcnt({3*(P-2)})")
    if stamp: stamp_mark(a, 1)
    if not no_compute: trread(0, 0)
    a(f"s_mov_b32 s{sCnt}, {NSTEP // P}")
    a.label(f"{name}_LOOP")
    a.loop_begin("L", NSTEP // P)
    for st in range(P):
        if st == 1:
            a(f"""
            s_cmp_eq_u32 s{sCnt}, 1
            s_cselect_b32 s{SRD_W+2}, 0, s{SRD_W+2}
            s_cselect_b32 s{SRD_O+2}, 0, s{SRD_O+2}
            """)
        issue((st - 1) % P)
        a(f"s_waitcnt vmcnt({3*(P-2)})")
        if no_compute: continue
        trread((st + 1) % P, (st + 1) % 2)
        a("s_waitcnt lgkmcnt(4)")
        for nb in range(2):
            a(f"v_mfma_f32_32x32x16_bf16 {acc(nb)}, {wf(st % 2, nb)}, {oreg(st)}, {acc(nb)}")
    a(f"""
    s_sub_u32 s{sCnt}, s{sCnt}, 1
    s_cmp_lg_u32 s{sCnt}, 0
    s_cbranch_scc1 {name}_LOOP
    """)
    a.loop_end("L")
    if stamp: stamp_mark(a, 2)
    a(f"""
    s_waitcnt vmcnt(0) lgkmcnt(0)
    v_lshlrev_b32 v{vRed}, 4, v{vLane}
    v_add_u32 v{vT1}, s{sLB}, v{vRed}
    """)
    for q8 in range(8):
        a(f"ds_write_b128 v{vT1}, v[{ACC+4*q8}:{ACC+4*q8+3}] offset:{q8*1024}")
    NQ = 8 // NWV
    a(f"""
    s_lshl_b32 s{sT0}, s{sWV}, {10 + (NQ.bit_length() - 1)}
    v_add_u32 v{vRed}, s{sT0}, v{vRed}
    """)
    nwin = (NWV * WAVE_LDS + 65535) // 65536
    vWin = [vRed] + [vT2, vT3, vT4][:nwin - 1]
    for i in range(1, nwin):
        a(f"v_add_u32 v{vWin[i]}, {i*65536}, v{vRed}")
    a(f"""
    s_waitcnt lgkmcnt(0)
    s_barrier
    """)
    RD = 128
    for wq in range(NWV):
        for e in range(NQ):
            off = wq * WAVE_LDS + e * 1024
            a(f"ds_read_b128 v[{RD+(wq*NQ+e)*4}:{RD+(wq*NQ+e)*4+3}], v{vWin[off // 65536]} offset:{off % 65536}")
    a(f"""
    v_and_b32 v{vOutA}, 31, v{vLane}
    v_lshlrev_b32 v{vOutA}, 11, v{vOutA}
    v_lshrrev_b32 v{vT1}, 5, v{vLane}
    v_lshl_add_u32 v{vOutA}, v{vT1}, 3, v{vOutA}
    s_lshl_b32 s{sT0}, s{sMT}, 16
    s_lshl_b32 s{sT1}, s{sNT}, 7
    s_add_u32 s{sT0}, s{sT0}, s{sT1}
    s_lshl_b32 s{sT1}, s{sWV}, {4 + (NQ.bit_length() - 1)}
    s_add_u32 s{sT0}, s{sT0}, s{sT1}
    """)
    a("s_waitcnt lgkmcnt(0)")
    for e in range(NQ):
        n = NWV
        while n > 1:
            h = n // 2
            for j in range(h):
                for r in range(4):
                    d = RD + (j * NQ + e) * 4 + r; s_ = RD + ((j + h) * NQ + e) * 4 + r
                    a(f"v_add_f32 v{d}, v{d}, v{s_}")
            n = h
        a(f"v_cvt_pk_bf16_f32 v{WF+2*e}, v{RD+e*4}, v{RD+e*4+1}")
        a(f"v_cvt_pk_bf16_f32 v{WF+2*e+1}, v{RD+e*4+2}, v{RD+e*4+3}")
        a(f"buffer_store_dwordx2 v[{WF+2*e}:{WF+2*e+1}], v{vOutA}, s[{SRD_OUT}:{SRD_OUT+3}], s{sT0} offen offset:{e*16}")
    if stamp: stamp_end(a, sWV)
    a.label(f"{name}_END")
    a("s_endpgm")
    return a

if __name__ == "__main__":
    for NWV in (4, 8):
        a = gen_k2(NWV=NWV)
        a.fix_hazards(True)
        errs = a.verify_waits()
        print("NWV", NWV, "wait errors:", len(errs)); [print(e) for e in errs[:20]]
        print("static/dynamic instruction counts:", a.count())
    open("k2_body.s", "w").write(a.text())
```

```python
import sys
from gen_k2 import gen_k2, k2_lds
from gen_k1 import gen_k1, K1_LDS, k1_text
def body_of(a):
    a.fix_hazards(False)
    errs = a.verify_waits()
    if errs:
        print("WAIT ERRORS:"); [print(e) for e in errs[:30]]; sys.exit(1)
    return a.text()
K2KW = dict(NWV=8, P=8, rot=True, G=2)
NAME = "standalone__mha_block_cached__near_ridge"
ref_head = open(f"cdna_kernels/{NAME}.s.ref").read().split("\n")
layout = [l for l in ref_head if l.startswith(";") and ("offset" in l or "Kernarg" in l)]
hdr = "\n".join(layout) + "\n"
hdr += "; Two launches: K1 = fused q-projection + attention per (batch, head), o -> d_ws (bf16, MFMA fragment order);\n"
hdr += ";               K2 = output projection o @ wo.  Generated by my own generator scripts (dev/gen_k1.py, dev/gen_k2.py).\n"
hdr += f"; @launch kernel=mha_k1_kernel grid=(256,1,1) block=(512,1,1) lds={K1_LDS}\n"
hdr += f"; @launch kernel=mha_k2_kernel grid=(256,1,1) block=(512,1,1) lds={k2_lds(8, 8)}\n"
def kern(name, body):
    return f".globl {name}\n.p2align 8\n.type {name},@function\n{name}:\n{body}\n"
def desc(name, vgpr=256, sgpr=102):
    return f""".amdhsa_kernel {name}
  .amdhsa_next_free_vgpr {vgpr}
  .amdhsa_next_free_sgpr {sgpr}
  .amdhsa_accum_offset {min(256, (vgpr + 3) // 4 * 4)}
  .amdhsa_group_segment_fixed_size 0
  .amdhsa_kernarg_size 64
  .amdhsa_user_sgpr_count 2
  .amdhsa_user_sgpr_kernarg_segment_ptr 1
  .amdhsa_system_sgpr_workgroup_id_x 1
.end_amdhsa_kernel
"""
s = hdr + '.amdgcn_target "amdgcn-amd-amdhsa--gfx950"\n.text\n'
s += kern("mha_k1_kernel", k1_text("k1", role=2, polKV=""))
s += kern("mha_k2_kernel", body_of(gen_k2("k2", **K2KW)))
s += '.section .rodata,"a"\n.p2align 6\n' + desc("mha_k1_kernel") + ".p2align 6\n" + desc("mha_k2_kernel")
open(f"cdna_kernels/{NAME}.s", "w").write(s)
print("wrote", len(s), "bytes")
```

```python
import re

TRANS = ("v_exp_f32", "v_log_f32", "v_rcp_f32", "v_rsq_f32", "v_sqrt_f32", "v_sin_f32", "v_cos_f32")
MFMA_PASSES = {"v_mfma_f32_32x32x16_bf16": 8, "v_mfma_f32_16x16x32_bf16": 4}

_reg_re = re.compile(r"^(-|abs\()?([vsa])(\d+)\)?$")
_rng_re = re.compile(r"^(-)?([vsa])\[(\d+):(\d+)\]$")

def regs_of(tok):
    tok = tok.strip()
    m = _reg_re.match(tok)
    if m: return {(m.group(2), int(m.group(3)))}
    m = _rng_re.match(tok)
    if m: return {(m.group(2), i) for i in range(int(m.group(3)), int(m.group(4)) + 1)}
    if tok in ("m0", "exec", "scc"): return {(tok, 0)}
    if tok == "vcc": return {("s", 106), ("s", 107)}
    if tok == "vcc_lo": return {("s", 106)}
    if tok == "vcc_hi": return {("s", 107)}
    return set()

class Ins:
    __slots__ = ("text", "mn", "ops", "mods", "dst", "src", "kind", "n", "srcA", "srcB", "srcC", "auto")
    def __init__(self, text, auto=False):
        self.text = text.strip(); self.auto = auto
        t = self.text.split(";")[0].split("//")[0].strip()
        parts = t.split(None, 1)
        self.mn = mn = parts[0]
        rest = parts[1] if len(parts) > 1 else ""
        toks = [x.strip() for x in rest.split(",")] if rest else []
        mods = []
        if toks:
            last = toks[-1].split()
            if last:
                toks[-1] = last[0]; mods = last[1:]
        self.ops = toks; self.mods = mods
        self.dst = set(); self.src = set(); self.n = 1
        self.srcA = self.srcB = self.srcC = None
        R = [regs_of(x) for x in toks]
        def rd(*idx):
            for i in idx:
                if i < len(R): self.src |= R[i]
        def wr(*idx):
            for i in idx:
                if i < len(R): self.dst |= R[i]
        if mn == "s_nop":
            self.kind = "nop"; self.n = int(toks[0], 0) + 1
        elif mn in ("s_waitcnt", "s_barrier", "s_endpgm", "s_setprio", "s_sleep"):
            self.kind = "sctl"
        elif mn.startswith("s_cbranch") or mn == "s_branch":
            self.kind = "branch"
        elif mn.startswith("s_load") or mn in ("s_memtime", "s_memrealtime"):
            self.kind = "smem"; wr(0); rd(*range(1, len(R)))
        elif mn.startswith("s_cmp"):
            self.kind = "salu"; rd(*range(len(R)))
        elif mn in ("s_and_saveexec_b64", "s_or_saveexec_b64"):
            self.kind = "salu"; wr(0); rd(1); self.dst |= {("exec", 0)}; self.src |= {("exec", 0)}
        elif mn.startswith("s_"):
            self.kind = "salu"; wr(0); rd(*range(1, len(R)))
            if mn in ("s_addk_i32", "s_mulk_i32"): rd(0)
        elif mn.startswith("v_mfma"):
            self.kind = "mfma"; wr(0); rd(1, 2, 3)
            self.srcA, self.srcB, self.srcC = R[1], R[2], R[3]
        elif mn.startswith("v_"):
            self.kind = "valu"
            if "swap" in mn:
                wr(0, 1); rd(0, 1)
            elif mn.startswith("v_add_co") or mn.startswith("v_sub_co") or mn.startswith("v_addc") or mn.startswith("v_subb"):
                wr(0, 1); rd(*range(2, len(R)))
            elif mn.startswith("v_fmac") or mn.startswith("v_pk_fmac"):
                wr(0); rd(*range(0, len(R)))
            else:
                wr(0); rd(*range(1, len(R)))
        elif mn.startswith("buffer_load") or mn.startswith("buffer_atomic"):
            self.kind = "vmem"
            if "lds" in mods:
                rd(*range(len(R))); self.src |= {("m0", 0)}
            else:
                wr(0); rd(*range(1, len(R)))
        elif mn.startswith("buffer_store"):
            self.kind = "vmem"; rd(*range(len(R)))
        elif mn.startswith("global_load_lds"):
            self.kind = "vmem"; rd(*range(len(R))); self.src |= {("m0", 0)}
        elif mn.startswith("global_load"):
            self.kind = "vmem"; wr(0); rd(*range(1, len(R)))
        elif mn.startswith("global_store"):
            self.kind = "vmem"; rd(*range(len(R)))
        elif mn.startswith("ds_read") or mn.startswith("ds_bpermute") or mn.startswith("ds_swizzle"):
            self.kind = "ds"; wr(0); rd(*range(1, len(R)))
        elif mn.startswith("ds_write"):
            self.kind = "ds"; rd(*range(len(R)))
        else:
            raise ValueError("unknown instruction: " + text)
        if self.kind in ("valu", "mfma", "vmem", "ds"):
            self.src |= {("exec", 0)}
    @property
    def is_lds_dma(self): return self.kind == "vmem" and ("lds" in self.mods or self.mn.startswith("global_load_lds"))
    @property
    def is_store(self): return self.mn.startswith(("buffer_store", "global_store"))
    @property
    def is_dpp(self): return "dpp" in self.mn or any(m.startswith(("row_", "quad_perm", "wave_")) for m in self.mods)

class Asm:
    def __init__(self):
        self.ignore = set()
        self.items = []
    def __call__(self, text):
        for ln in text.strip().split("\n"):
            ln = ln.strip()
            if not ln: continue
            if ln.startswith(";"): self.items.append(("comment", ln)); continue
            if ln.endswith(":"): self.items.append(("label", ln[:-1])); continue
            self.items.append(Ins(ln))
    def comment(self, t): self.items.append(("comment", "; " + t))
    def label(self, name): self.items.append(("label", name))
    def loop_begin(self, name, count): self.items.append(("loop_begin", name, count))
    def loop_end(self, name): self.items.append(("loop_end", name))
    def trace(self):
        out = []
        def run(i, stop):
            while i < len(self.items):
                it = self.items[i]
                if isinstance(it, tuple) and it[0] == "loop_begin":
                    j = i + 1; depth = 1
                    while depth:
                        t = self.items[j]
                        if isinstance(t, tuple) and t[0] == "loop_begin": depth += 1
                        if isinstance(t, tuple) and t[0] == "loop_end": depth -= 1
                        j += 1
                    for _ in range(it[2]): run(i + 1, j - 1)
                    i = j; continue
                if i == stop: return
                if isinstance(it, Ins): out.append(i)
                i += 1
                if i == stop: return
        run(0, -1)
        return out
    def _hazard_scan(self):
        need = {}
        pos = 0
        valu_w = {}; trans_w = {}; mfma_w = {}; mfma_c = {}; valu_sw = {}; store_d = {}; m0_w = None; valu_exec = None
        for idx in self.trace():
            ins = self.items[idx]
            req = 0
            def want(ppos, ws):
                nonlocal req
                if ppos is None: return
                d = ws - (pos - ppos - 1)
                if d > req: req = d
            k = ins.kind
            vs = {r for r in ins.src if r[0] in "va"}; vd = {r for r in ins.dst if r[0] in "va"}
            ss = {r for r in ins.src if r[0] == "s"}
            if k == "mfma":
                for r in vs: want(valu_w.get(r), 2)
            if k in ("mfma", "valu", "vmem", "ds"):
                for r in (vs | vd):
                    if r in mfma_w:
                        ppos, passes, tup, mn = mfma_w[r]
                        if k == "mfma":
                            if r in ins.srcC and not (r in ins.srcA or r in ins.srcB):
                                if ins.srcC == tup and ins.mn == mn: ws = 0 if passes >= 4 else 2
                                else: ws = {2: 4, 4: 6, 8: 10, 16: 18}[passes]
                            elif r in ins.srcA or r in ins.srcB:
                                ws = {2: 5, 4: 8, 8: 12, 16: 20}[passes]
                            else:
                                ws = {2: 4, 4: 6, 8: 10, 16: 18}[passes]
                        else:
                            ws = {2: 5, 4: 8, 8: 12, 16: 20}[passes]
                        want(ppos, ws)
            if k == "valu":
                for r in vd:
                    if r in mfma_c:
                        ppos, passes = mfma_c[r]; want(ppos, {2: 1, 4: 3, 8: 7, 16: 15}[passes])
                    if r in store_d: want(store_d[r], 2)
                for r in ss: want(valu_sw.get(r), 2)
                if ins.mn.startswith(("v_readfirstlane", "v_readlane")):
                    for r in vs: want(valu_w.get(r), 1)
                if "permlane" in ins.mn or ins.is_dpp:
                    for r in vs: want(valu_w.get(r), 2)
                if ins.mn not in TRANS:
                    for r in vs: want(trans_w.get(r), 1)
            if k in ("vmem", "ds"):
                for r in vd:
                    if r in store_d: want(store_d[r], 1)
            if k == "vmem":
                for r in ss: want(valu_sw.get(r), 5)
                if ins.is_lds_dma: want(m0_w, 1)
            if k == "salu":
                for r in ss: want(valu_sw.get(r), 1)
            if req > 0: need[idx] = max(need.get(idx, 0), req)
            if k == "valu":
                for r in vd:
                    valu_w[r] = pos
                    if ins.mn in TRANS: trans_w[r] = pos
                    else: trans_w.pop(r, None)
                    mfma_w.pop(r, None)
                for r in ins.dst:
                    if r[0] == "s": valu_sw[r] = pos
            elif k == "mfma":
                p = MFMA_PASSES[ins.mn]
                for r in vd:
                    mfma_w[r] = (pos, p, ins.dst, ins.mn); valu_w.pop(r, None); trans_w.pop(r, None)
                for r in ins.srcC: mfma_c[r] = (pos, p)
            elif k in ("vmem", "ds"):
                for r in vd:
                    valu_w.pop(r, None); trans_w.pop(r, None); mfma_w.pop(r, None)
                if ins.is_store and ("x4" in ins.mn or "x3" in ins.mn):
                    for r in vs: store_d[r] = pos
            elif k in ("salu", "smem"):
                for r in ins.dst:
                    valu_sw.pop(r, None)
                    if r == ("m0", 0): m0_w = pos
            pos += ins.n
        return need
    def fix_hazards(self, verbose=False):
        total = 0
        for _ in range(50):
            need = self._hazard_scan()
            if not need: break
            for idx in sorted(need, reverse=True):
                d = need[idx]; total += d
                self.items.insert(idx, Ins(f"s_nop {d-1}", auto=True))
        if verbose: print("hazard nops inserted (wait states):", total)
        return total
    def verify_waits(self):
        errs = []
        vm = []
        lg = []
        def pend(q):
            s = set()
            for e in q: s |= e[1]
            return s
        for idx in self.trace():
            ins = self.items[idx]
            if ins.mn == "s_waitcnt":
                m = re.search(r"vmcnt\((\d+)\)", ins.text)
                if m:
                    n = int(m.group(1))
                    while len(vm) > n: vm.pop(0)
                m = re.search(r"lgkmcnt\((\d+)\)", ins.text)
                if m:
                    n = int(m.group(1))
                    if any(e[2] for e in lg) and n != 0:
                        errs.append(f"[{idx}] counted lgkmcnt with SMEM outstanding: {ins.text}")
                    while len(lg) > n: lg.pop(0)
                continue
            touched = {r for r in (ins.src | ins.dst)} - self.ignore
            bad = touched & pend(vm)
            if bad: errs.append(f"[{idx}] {ins.text}  touches regs of outstanding VMEM load: {sorted(bad)[:4]}")
            bad = touched & pend(lg)
            if bad: errs.append(f"[{idx}] {ins.text}  touches regs of outstanding LGKM op: {sorted(bad)[:4]}")
            if ins.kind == "vmem":
                vm.append((idx, set(ins.dst)))
                if len(vm) > 63: errs.append(f"[{idx}] more than 63 vmem outstanding")
            elif ins.kind == "ds":
                lg.append((idx, set(ins.dst), False))
            elif ins.kind == "smem":
                lg.append((idx, set(ins.dst), True))
        return errs
    def text(self):
        out = []
        for it in self.items:
            if isinstance(it, Ins): out.append("    " + it.text)
            elif it[0] == "label": out.append(it[1] + ":")
            elif it[0] == "comment": out.append("    " + it[1])
        return "\n".join(out) + "\n"
    def count(self):
        tr = self.trace()
        return len([i for i in self.items if isinstance(i, Ins)]), len(tr)

def stamp(a, k):
    a(f"s_memrealtime s[{70+2*k}:{71+2*k}]")
    a("s_waitcnt lgkmcnt(0)")
def stamp_begin(a):
    for k in range(8): a(f"s_mov_b32 s{70+2*k}, 0")
    stamp(a, 0)
def stamp_mark(a, k): stamp(a, k)
def stamp_end(a, sWave, vb=200):
    a("s_waitcnt vmcnt(0) lgkmcnt(0)")
    stamp(a, 7)
    a(f"""
    s_load_dwordx2 s[88:89], s[0:1], 48
    s_waitcnt lgkmcnt(0)
    s_lshl_b32 s86, s2, 4
    s_add_u32 s86, s86, s{sWave}
    s_lshl_b32 s86, s86, 5
    """)
    for k in range(8): a(f"v_mov_b32 v{vb+k}, s{70+2*k}")
    a(f"""
    v_mov_b32 v{vb+8}, s86
    v_cmp_eq_u32 vcc, 0, v1
    s_nop 4
    s_and_saveexec_b64 s[84:85], vcc
    global_store_dwordx4 v{vb+8}, v[{vb}:{vb+3}], s[88:89]
    global_store_dwordx4 v{vb+8}, v[{vb+4}:{vb+7}], s[88:89] offset:16
    s_waitcnt vmcnt(0)
    s_mov_b64 exec, s[84:85]
    """)
```

```python
from gasm import *

D = 4
SLOT = 24576
KBASE = D * SLOT
VBASE = KBASE + 16384
K1_LDS = VBASE + 16384
XCH = 0
QBASE = 32768
NST = 16

def gen_k1(name="k1", stamp=False, rot=True, polW="", polX="", polKV="nt", role="both", no_dma=False, no_reads=False, no_mfma=False, no_bar=False, pf_wo=True):
    a = Asm()
    a.ignore |= {("v", 16)}
    SRD_X, SRD_WQ, SRD_K, SRD_V, SRD_WS = 16, 20, 24, 28, 32
    (sW, sB, sH, sRot, sStage, sOffW, sOffX, sBaseW, sBaseX, sLW, sLX, sCnt, sT0, sT1, sT2, sT3,
     sKV, sScale, sLog2e, sG, sDW, sOffW2) = range(36, 58)
    vLane = 1
    vDWq, vDX = 2, 3
    vA0, vA1 = 4, 7
    vB = {(0, 0, 0): 5, (0, 0, 1): 6, (0, 1, 0): 8, (0, 1, 1): 9,
          (1, 0, 0): 10, (1, 0, 1): 11, (1, 1, 0): 12, (1, 1, 1): 13}
    vT = [14, 15, 252, 253, 254, 255, 250, 251]
    AF = 16
    BF = 32
    ACC = 64
    def af(buf, tt, i=None):
        b = AF + 8 * buf + 4 * tt
        return f"v[{b}:{b+3}]" if i is None else f"v[{b+2*i}:{b+2*i+1}]"
    def bf(buf, tt, idx): b = BF + 16 * buf + 8 * tt + 4 * idx; return f"v[{b}:{b+3}]"
    def acc(idx): return f"v[{ACC+16*idx}:{ACC+16*idx+15}]"

    if stamp: stamp_begin(a)
    a(f"""
    s_cmp_ge_u32 s2, 256
    s_cbranch_scc1 {name}_END
    s_load_dwordx8 s[4:11], s[0:1], 0
    s_load_dwordx2 s[12:13], s[0:1], 56
    s_load_dwordx2 s[14:15], s[0:1], 32
    v_and_b32 v{vLane}, 63, v0
    v_lshrrev_b32 v{vT[0]}, 6, v0
    v_readfirstlane_b32 s{sW}, v{vT[0]}
    s_and_b32 s{sT0}, s2, 7
    s_lshl_b32 s{sT0}, s{sT0}, 2
    s_bfe_u32 s{sT1}, s2, 0x20003
    s_add_u32 s{sH}, s{sT0}, s{sT1}
    s_lshr_b32 s{sB}, s2, 5
    s_and_b32 s{sDW}, s{sW}, 3
    s_lshr_b32 s{sG}, s{sW}, 2
    s_and_b32 s{sT0}, s{sH}, 3
    s_lshl_b32 s{sT0}, s{sT0}, 1
    s_add_u32 s{sT0}, s{sT0}, s{sB}
    s_lshl_b32 s{sT0}, s{sT0}, 1
    s_and_b32 s{sRot}, s{sT0}, 15
    s_mov_b32 s{sStage}, 0
    s_lshl_b32 s{sBaseW}, s{sH}, 8
    s_lshl_b32 s{sBaseX}, s{sB}, 17
    s_lshl_b32 s{sLW}, s{sW}, 11
    s_lshl_b32 s{sLX}, s{sW}, 10
    s_add_u32 s{sLX}, s{sLX}, 16384
    s_lshl_b32 s{sT0}, s{sB}, 5
    s_add_u32 s{sT0}, s{sT0}, s{sH}
    s_lshl_b32 s{sKV}, s{sT0}, 14
    """)
    if not rot: a(f"s_mov_b32 s{sRot}, 0")
    t0, t1, t2, t3 = vT[0], vT[1], vT[2], vT[3]
    a(f"""
    v_lshrrev_b32 v{t0}, 4, v{vLane}
    v_and_b32 v{t1}, 15, v{vLane}
    v_lshlrev_b32 v{t2}, 2, v{t0}
    v_xor_b32 v{t1}, v{t1}, v{t2}
    v_lshlrev_b32 v{vDWq}, 13, v{t0}
    v_lshl_add_u32 v{vDWq}, v{t1}, 4, v{vDWq}
    s_lshl_b32 s{sT0}, s{sW}, 16
    v_add_u32 v{vDWq}, s{sT0}, v{vDWq}
    v_lshrrev_b32 v{t1}, 3, v{vLane}
    v_and_b32 v{t2}, 7, v{vLane}
    v_xor_b32 v{t2}, v{t2}, v{t0}
    s_and_b32 s{sT0}, s{sW}, 1
    s_lshl_b32 s{sT0}, s{sT0}, 2
    v_xor_b32 v{t2}, s{sT0}, v{t2}
    v_lshlrev_b32 v{vDX}, 11, v{t1}
    v_lshl_add_u32 v{vDX}, v{t2}, 4, v{vDX}
    s_lshl_b32 s{sT0}, s{sW}, 14
    v_add_u32 v{vDX}, s{sT0}, v{vDX}
    v_lshrrev_b32 v{t0}, 5, v{vLane}
    v_lshlrev_b32 v{vA0}, 11, v{t0}
    v_bfe_u32 v{t0}, v{vLane}, 2, 2
    v_lshl_add_u32 v{vA0}, v{t0}, 8, v{vA0}
    v_xor_b32 v{t0}, s{sDW}, v{t0}
    v_lshl_add_u32 v{vA0}, v{t0}, 6, v{vA0}
    v_bfe_u32 v{t0}, v{vLane}, 4, 1
    v_lshl_add_u32 v{vA0}, v{t0}, 5, v{vA0}
    v_and_b32 v{t0}, 3, v{vLane}
    v_lshl_add_u32 v{vA0}, v{t0}, 3, v{vA0}
    s_lshl_b32 s{sT0}, s{sG}, 13
    v_add_u32 v{vA0}, s{sT0}, v{vA0}
    v_add_u32 v{vA1}, 49152, v{vA0}
    v_and_b32 v{t0}, 31, v{vLane}
    v_lshlrev_b32 v{t0}, 7, v{t0}
    v_lshrrev_b32 v{t1}, 5, v{vLane}
    v_bfe_u32 v{t2}, v{vLane}, 1, 3
    v_xor_b32 v{t1}, v{t1}, v{t2}
    s_lshl_b32 s{sT0}, s{sG}, 2
    v_xor_b32 v{t1}, s{sT0}, v{t1}
    v_lshl_add_u32 v{t0}, v{t1}, 4, v{t0}
    s_lshl_b32 s{sT0}, s{sG}, 12
    v_add_u32 v{vB[(0,0,0)]}, s{sT0}, v{t0}
    v_xor_b32 v{vB[(1,0,0)]}, 32, v{vB[(0,0,0)]}
    v_xor_b32 v{vB[(0,1,0)]}, 4096, v{vB[(0,0,0)]}
    v_xor_b32 v{vB[(1,1,0)]}, 4096, v{vB[(1,0,0)]}
    """)
    for tt in range(2):
        for idx in range(2):
            a(f"v_add_u32 v{vB[(tt,idx,1)]}, 49152, v{vB[(tt,idx,0)]}")
    for i in range(32):
        a(f"v_mov_b32 v{ACC+i}, 0")
    for i in range(8): a(f"v_mov_b32 v{AF+8+i}, 0")
    for i in range(16): a(f"v_mov_b32 v{BF+16+i}, 0")
    a(f"""
    s_waitcnt lgkmcnt(0)
    s_mov_b32 s{SRD_X}, s4
    s_and_b32 s{SRD_X+1}, s5, 0xffff
    s_mov_b32 s{SRD_X+2}, 0x100000
    s_mov_b32 s{SRD_X+3}, 0x00020000
    s_mov_b32 s{SRD_WQ}, s10
    s_and_b32 s{SRD_WQ+1}, s11, 0xffff
    s_mov_b32 s{SRD_WQ+2}, 0x800000
    s_mov_b32 s{SRD_WQ+3}, 0x00020000
    """)
    def issue(slot):
        sb = slot * SLOT
        if no_dma: return
        a(f"""
        s_add_u32 s{sT0}, s{sStage}, s{sRot}
        s_and_b32 s{sT0}, s{sT0}, 15
        s_lshl_b32 s{sT1}, s{sT0}, 19
        s_add_u32 s{sOffW}, s{sBaseW}, s{sT1}
        s_add_u32 m0, s{sLW}, {sb}
        s_lshl_b32 s{sT3}, s{sT0}, 7
        buffer_load_dwordx4 v{vDWq}, s[{SRD_WQ}:{SRD_WQ+3}], s{sOffW} offen {polW} lds
        s_add_u32 s{sOffW2}, s{sOffW}, 32768
        s_add_u32 m0, s{sLW}, {sb + 1024}
        s_add_u32 s{sOffX}, s{sBaseX}, s{sT3}
        buffer_load_dwordx4 v{vDWq}, s[{SRD_WQ}:{SRD_WQ+3}], s{sOffW2} offen {polW} lds
        s_add_u32 m0, s{sLX}, {sb}
        s_add_u32 s{sStage}, s{sStage}, 1
        buffer_load_dwordx4 v{vDX}, s[{SRD_X}:{SRD_X+3}], s{sOffX} offen {polX} lds
        """)
    for s in range(D - 1): issue(s)
    a(f"""
    s_mov_b32 s{SRD_K}, s6
    s_and_b32 s{SRD_K+1}, s7, 0xffff
    s_mov_b32 s{SRD_K+2}, 0x400000
    s_mov_b32 s{SRD_K+3}, 0x00020000
    s_mov_b32 s{SRD_V}, s8
    s_and_b32 s{SRD_V+1}, s9, 0xffff
    s_mov_b32 s{SRD_V+2}, 0x400000
    s_mov_b32 s{SRD_V+3}, 0x00020000
    s_mov_b32 s{SRD_WS}, s12
    s_and_b32 s{SRD_WS+1}, s13, 0xffff
    s_mov_b32 s{SRD_WS+2}, 0x400000
    s_mov_b32 s{SRD_WS+3}, 0x00020000
    v_lshrrev_b32 v{t0}, 4, v{vLane}
    v_and_b32 v{t1}, 15, v{vLane}
    v_lshlrev_b32 v{t2}, 8, v{t0}
    s_lshl_b32 s{sT0}, s{sW}, 11
    v_add_u32 v{t2}, s{sT0}, v{t2}
    v_xor_b32 v{t3}, v{t1}, v{t0}
    s_and_b32 s{sT0}, s{sW}, 1
    s_lshl_b32 s{sT0}, s{sT0}, 3
    v_xor_b32 v{t3}, s{sT0}, v{t3}
    v_lshl_add_u32 v246, v{t3}, 4, v{t2}
    v_xor_b32 v{t3}, 4, v{t3}
    v_lshl_add_u32 v247, v{t3}, 4, v{t2}
    v_add_u32 v247, 1024, v247
    v_lshlrev_b32 v{t3}, 1, v{t0}
    v_xor_b32 v{t3}, v{t1}, v{t3}
    v_lshl_add_u32 v248, v{t3}, 4, v{t2}
    v_xor_b32 v{t3}, 8, v{t3}
    v_lshl_add_u32 v249, v{t3}, 4, v{t2}
    v_add_u32 v249, 1024, v249
    s_mov_b32 s{sCnt}, {NST // D}
    """)
    if stamp: stamp_mark(a, 1)
    a.label(f"{name}_LOOP")
    a.loop_begin("L", NST // D)
    def kv_issue(sl, tag):
        srd = SRD_K if sl < 2 else SRD_V
        base = (KBASE if sl < 2 else VBASE) + (sl & 1) * 1024
        a(f"""
        s_cmp_lg_u32 s{sCnt}, {NST // D - 1}
        s_cbranch_scc1 {name}_NKV{sl}{tag}
        s_add_u32 m0, s{sLW}, {base}
        s_nop 0
        buffer_load_dwordx4 v{246+sl}, s[{srd}:{srd+3}], s{sKV} offen {polKV} lds
        """)
        a.label(f"{name}_NKV{sl}{tag}")
    def mfma1(buf, j):
        tt, idx = j >> 1, j & 1
        if not no_mfma: a(f"v_mfma_f32_32x32x16_bf16 {acc(idx)}, {af(buf,tt)}, {bf(buf,tt,idx)}, {acc(idx)}")
    for sl in range(D):
        win = sl >> 1; so = (sl & 1) * SLOT
        vA = vA0 if win == 0 else vA1
        buf = sl & 1
        a(f"s_waitcnt vmcnt({3*(D-2)})")
        if not no_bar: a("s_barrier")
        if stamp and sl == 0:
            a(f"s_cmp_lg_u32 s{sCnt}, {NST // D}")
            a(f"s_cbranch_scc1 {name}_SK1")
            stamp_mark(a, 2)
            a.label(f"{name}_SK1")
        for tt in range(2):
            if no_reads: break
            a(f"ds_read_b64_tr_b16 {af(buf,tt,0)}, v{vA} offset:{so + tt*4096}")
            a(f"ds_read_b64_tr_b16 {af(buf,tt,1)}, v{vA} offset:{so + tt*4096 + 1024}")
            a(f"ds_read_b128 {bf(buf,tt,0)}, v{vB[(tt,0,win)]} offset:{so + 16384}")
            a(f"ds_read_b128 {bf(buf,tt,1)}, v{vB[(tt,1,win)]} offset:{so + 16384}")
        if sl == 1:
            a(f"""
            s_add_u32 s{sT2}, s{sLW}, 0x28000
            s_add_u32 s{sT3}, s{sLX}, 0x28000
            s_cmp_eq_u32 s{sCnt}, 1
            s_cselect_b32 s{SRD_WQ+2}, 0, s{SRD_WQ+2}
            s_cselect_b32 s{SRD_X+2}, 0, s{SRD_X+2}
            s_cselect_b32 s{sLW}, s{sT2}, s{sLW}
            s_cselect_b32 s{sLX}, s{sT3}, s{sLX}
            """)
        if role == "both":
            a(f"""
            s_cmp_eq_u32 s{sG}, 0
            s_cbranch_scc0 {name}_G1_{sl}
            """)
            issue((sl + D - 1) % D); kv_issue(sl, "a")
            for j in range(4): mfma1(buf ^ 1, j)
            a(f"s_branch {name}_GJ_{sl}")
            a.label(f"{name}_G1_{sl}")
            for j in range(4): mfma1(buf ^ 1, j)
            issue((sl + D - 1) % D); kv_issue(sl, "b")
            a.label(f"{name}_GJ_{sl}")
        elif role == 0:
            issue((sl + D - 1) % D); kv_issue(sl, "a")
            for j in range(4): mfma1(buf ^ 1, j)
        elif role == 1:
            for j in range(4): mfma1(buf ^ 1, j)
            issue((sl + D - 1) % D); kv_issue(sl, "b")
        a("s_waitcnt lgkmcnt(0)")
    a(f"""
    s_sub_u32 s{sCnt}, s{sCnt}, 1
    s_cmp_lg_u32 s{sCnt}, 0
    s_cbranch_scc1 {name}_LOOP
    """)
    a.loop_end("L")
    for j in range(4): mfma1((D - 1) & 1, j)
    a("s_nop 15")
    if stamp: stamp_mark(a, 3)
    vX = vT[0]
    a("s_waitcnt vmcnt(0)")
    if pf_wo:
        a(f"""
        s_mov_b32 s{SRD_X}, s14
        s_and_b32 s{SRD_X+1}, s15, 0xffff
        s_mov_b32 s{SRD_X+2}, 0x800000
        s_mov_b32 s{SRD_X+3}, 0x00020000
        v_lshrrev_b32 v{vT[2]}, 2, v{vLane}
        v_lshlrev_b32 v{vT[2]}, 11, v{vT[2]}
        v_and_b32 v{vT[3]}, 3, v{vLane}
        v_lshl_add_u32 v{vT[2]}, v{vT[3]}, 7, v{vT[2]}
        s_bfe_u32 s{sT0}, s2, 0x20001
        s_lshl_b32 s{sT0}, s{sT0}, 9
        s_lshr_b32 s{sT1}, s2, 3
        s_lshl_b32 s{sT1}, s{sT1}, 18
        s_add_u32 s{sT0}, s{sT0}, s{sT1}
        s_lshl_b32 s{sT1}, s{sW}, 15
        s_add_u32 s{sT0}, s{sT0}, s{sT1}
        buffer_load_dword v16, v{vT[2]}, s[{SRD_X}:{SRD_X+3}], s{sT0} offen
        """)
    a(f"""
    v_lshlrev_b32 v{vX}, 4, v{vLane}
    s_lshl_b32 s{sT0}, s{sW}, 12
    v_add_u32 v{vT[1]}, s{sT0}, v{vX}
    """)
    for qd in range(4):
        a(f"ds_write_b128 v{vT[1]}, v[{ACC+16+4*qd}:{ACC+16+4*qd+3}] offset:{XCH + qd*1024}")
    a(f"""
    s_xor_b32 s{sT0}, s{sW}, 4
    s_lshl_b32 s{sT0}, s{sT0}, 12
    v_add_u32 v{vT[1]}, s{sT0}, v{vX}
    s_waitcnt lgkmcnt(0)
    s_barrier
    """)
    for qd in range(4):
        a(f"ds_read_b128 v[{ACC+16+4*qd}:{ACC+16+4*qd+3}], v{vT[1]} offset:{XCH + qd*1024}")
    a(f"""
    v_and_b32 v{vT[2]}, 31, v{vLane}
    v_lshlrev_b32 v{vT[2]}, 8, v{vT[2]}
    s_lshl_b32 s{sT0}, s{sG}, 13
    v_add_u32 v{vT[2]}, s{sT0}, v{vT[2]}
    v_and_b32 v{vT[3]}, 15, v{vLane}
    s_lshl_b32 s{sT0}, s{sDW}, 2
    v_xor_b32 v{vT[3]}, s{sT0}, v{vT[3]}
    v_lshl_add_u32 v{vT[2]}, v{vT[3]}, 4, v{vT[2]}
    v_lshrrev_b32 v{vT[3]}, 5, v{vLane}
    v_lshl_add_u32 v{vT[2]}, v{vT[3]}, 3, v{vT[2]}
    v_xor_b32 v{vT[3]}, 16, v{vT[2]}
    v_xor_b32 v{vT[4]}, 32, v{vT[2]}
    v_xor_b32 v{vT[5]}, 48, v{vT[2]}
    s_waitcnt lgkmcnt(0)
    """)
    for i in range(16):
        a(f"v_add_f32 v{ACC+i}, v{ACC+i}, v{ACC+16+i}")
    for i in range(8):
        a(f"v_cvt_pk_bf16_f32 v{ACC+16+i}, v{ACC+2*i}, v{ACC+2*i+1}")
    for aq in range(4):
        a(f"ds_write_b64 v{vT[2+aq]}, v[{ACC+16+2*aq}:{ACC+16+2*aq+1}] offset:{QBASE}")
    a("""
    s_waitcnt lgkmcnt(0)
    s_barrier
    """)
    if stamp: stamp_mark(a, 4)
    QF, KF, SA, VF, PB, OA = 96, 112, 176, 192, 224, 232
    vKQ = [2, 3, 4, 5]; vQa = [6, 7, 8, 9]; vVb = [10, 11, 12, 13]
    vM, vS, vTm, vSt = 246, 247, 248, 249
    def qf(ks): return f"v[{QF+4*ks}:{QF+4*ks+3}]"
    def kf(kb, ks): b = KF + 16 * kb + 4 * ks; return f"v[{b}:{b+3}]"
    def sa(kb): return f"v[{SA+4*kb}:{SA+4*kb+3}]"
    def vf(dd, j2, i=None):
        b = VF + 8 * dd + 4 * j2
        return f"v[{b}:{b+3}]" if i is None else f"v[{b+2*i}:{b+2*i+1}]"
    def pb(j2): return f"v[{PB+4*j2}:{PB+4*j2+3}]"
    def oa(dd): return f"v[{OA+4*dd}:{OA+4*dd+3}]"
    a(f"""
    v_and_b32 v{t0}, 15, v{vLane}
    v_lshrrev_b32 v{t1}, 4, v{vLane}
    v_xor_b32 v{t1}, v{t1}, v{t0}
    v_lshlrev_b32 v{t0}, 8, v{t0}
    v_lshl_add_u32 v{t0}, v{t1}, 4, v{t0}
    v_add_u32 v{vKQ[0]}, {KBASE}, v{t0}
    v_xor_b32 v{vKQ[1]}, 64, v{vKQ[0]}
    v_xor_b32 v{vKQ[2]}, 128, v{vKQ[0]}
    v_xor_b32 v{vKQ[3]}, 192, v{vKQ[0]}
    s_lshl_b32 s{sT0}, s{sDW}, 12
    s_add_u32 s{sT0}, s{sT0}, {QBASE}
    v_add_u32 v{vQa[0]}, s{sT0}, v{t0}
    v_xor_b32 v{vQa[1]}, 64, v{vQa[0]}
    v_xor_b32 v{vQa[2]}, 128, v{vQa[0]}
    v_xor_b32 v{vQa[3]}, 192, v{vQa[0]}
    """)
    for ks in range(4):
        a(f"ds_read_b128 {qf(ks)}, v{vQa[ks]}")
    for kb in range(2):
        for ks in range(4):
            a(f"ds_read_b128 {kf(kb,ks)}, v{vKQ[ks]} offset:{kb*4096}")
    a(f"""
    v_lshrrev_b32 v{t0}, 2, v{vLane}
    v_lshlrev_b32 v{t1}, 8, v{t0}
    v_bfe_u32 v{t2}, v{vLane}, 4, 1
    v_lshlrev_b32 v{t2}, 3, v{t2}
    v_bfe_u32 v{t3}, v{vLane}, 2, 2
    v_lshl_add_u32 v{t2}, v{t3}, 1, v{t2}
    v_lshl_add_u32 v{t1}, v{t2}, 4, v{t1}
    v_and_b32 v{t3}, 3, v{vLane}
    v_lshl_add_u32 v{t1}, v{t3}, 3, v{t1}
    s_lshl_b32 s{sT0}, s{sG}, 7
    v_xor_b32 v{t1}, s{sT0}, v{t1}
    v_add_u32 v{vVb[0]}, {VBASE}, v{t1}
    v_xor_b32 v{vVb[1]}, 32, v{vVb[0]}
    v_xor_b32 v{vVb[2]}, 64, v{vVb[0]}
    v_xor_b32 v{vVb[3]}, 96, v{vVb[0]}
    """)
    def mfma_s(kb, ks, first):
        c = "0" if first else sa(kb)
        a(f"v_mfma_f32_16x16x32_bf16 {sa(kb)}, {kf(kb,ks)}, {qf(ks)}, {c}")
    a("s_waitcnt lgkmcnt(4)")
    for ks in range(4): mfma_s(0, ks, ks == 0)
    for ks in range(4):
        a(f"ds_read_b128 {kf(2,ks)}, v{vKQ[ks]} offset:{2*4096}")
    a("s_waitcnt lgkmcnt(4)")
    for ks in range(4): mfma_s(1, ks, ks == 0)
    for ks in range(4):
        a(f"ds_read_b128 {kf(3,ks)}, v{vKQ[ks]} offset:{3*4096}")
    a("s_waitcnt lgkmcnt(4)")
    for ks in range(4): mfma_s(2, ks, ks == 0)
    for dd in range(2):
        for j2 in range(2):
            for i in range(2):
                a(f"ds_read_b64_tr_b16 {vf(dd,j2,i)}, v{vVb[dd]} offset:{j2*8192 + i*4096}")
    a("s_waitcnt lgkmcnt(8)")
    for ks in range(4): mfma_s(3, ks, ks == 0)
    a(f"""
    v_and_b32 v{t0}, 15, v{vLane}
    v_lshrrev_b32 v{t1}, 5, v{vLane}
    v_lshl_add_u32 v{t0}, v{t1}, 5, v{t0}
    v_lshlrev_b32 v{vSt}, 4, v{t0}
    v_bfe_u32 v{t1}, v{vLane}, 4, 1
    v_lshl_add_u32 v{vSt}, v{t1}, 3, v{vSt}
    s_and_b32 s{sT0}, s{sDW}, 1
    s_lshl_b32 s{sT0}, s{sT0}, 8
    v_add_u32 v{vSt}, s{sT0}, v{vSt}
    s_lshl_b32 s{sT0}, s{sB}, 1
    s_lshr_b32 s{sT1}, s{sDW}, 1
    s_add_u32 s{sT0}, s{sT0}, s{sT1}
    s_lshl_b32 s{sT0}, s{sT0}, 8
    s_lshl_b32 s{sT1}, s{sH}, 3
    s_add_u32 s{sT0}, s{sT0}, s{sT1}
    s_lshl_b32 s{sT1}, s{sG}, 2
    s_add_u32 s{sT0}, s{sT0}, s{sT1}
    s_lshl_b32 s{sT2}, s{sT0}, 10
    s_mov_b32 s{sScale}, 0x3db504f3
    s_mov_b32 s{sLog2e}, 0x3fb8aa3b
    """)
    for kb in range(4):
        S = [SA + 4 * kb + r for r in range(4)]
        a(f"""
        v_cvt_pk_bf16_f32 v{t0}, v{S[0]}, v{S[1]}
        v_cvt_pk_bf16_f32 v{t1}, v{S[2]}, v{S[3]}
        v_lshlrev_b32 v{S[0]}, 16, v{t0}
        v_and_b32 v{S[1]}, 0xffff0000, v{t0}
        v_lshlrev_b32 v{S[2]}, 16, v{t1}
        v_and_b32 v{S[3]}, 0xffff0000, v{t1}
        v_mul_f32 v{S[0]}, s{sScale}, v{S[0]}
        v_mul_f32 v{S[1]}, s{sScale}, v{S[1]}
        v_mul_f32 v{S[2]}, s{sScale}, v{S[2]}
        v_mul_f32 v{S[3]}, s{sScale}, v{S[3]}
        v_cvt_pk_bf16_f32 v{t0}, v{S[0]}, v{S[1]}
        v_cvt_pk_bf16_f32 v{t1}, v{S[2]}, v{S[3]}
        v_lshlrev_b32 v{S[0]}, 16, v{t0}
        v_and_b32 v{S[1]}, 0xffff0000, v{t0}
        v_lshlrev_b32 v{S[2]}, 16, v{t1}
        v_and_b32 v{S[3]}, 0xffff0000, v{t1}
        """)
    a(f"v_max3_f32 v{vM}, v{SA}, v{SA+1}, v{SA+2}")
    for i in range(3, 15, 2):
        a(f"v_max3_f32 v{vM}, v{vM}, v{SA+i}, v{SA+i+1}")
    a(f"v_max_f32 v{vM}, v{vM}, v{SA+15}")
    for sw in ("v_permlane16_swap_b32", "v_permlane32_swap_b32"):
        a(f"""
        v_mov_b32 v{vTm}, v{vM}
        {sw} v{vM}, v{vTm}
        v_max_f32 v{vM}, v{vM}, v{vTm}
        """)
    a(f"v_mul_f32 v{vM}, s{sLog2e}, v{vM}")
    for i in range(16):
        a(f"v_fma_f32 v{SA+i}, v{SA+i}, s{sLog2e}, -v{vM}")
    for i in range(16):
        a(f"v_exp_f32 v{SA+i}, v{SA+i}")
    for dd in range(2, 4):
        for j2 in range(2):
            for i in range(2):
                a(f"ds_read_b64_tr_b16 {vf(dd,j2,i)}, v{vVb[dd]} offset:{j2*8192 + i*4096}")
    a(f"v_add_f32 v{vS}, v{SA}, v{SA+1}")
    for i in range(2, 16):
        a(f"v_add_f32 v{vS}, v{vS}, v{SA+i}")
    for sw in ("v_permlane16_swap_b32", "v_permlane32_swap_b32"):
        a(f"""
        v_mov_b32 v{vTm}, v{vS}
        {sw} v{vS}, v{vTm}
        v_add_f32 v{vS}, v{vS}, v{vTm}
        """)
    a(f"v_rcp_f32 v{vS}, v{vS}")
    for i in range(16):
        a(f"v_mul_f32 v{SA+i}, v{SA+i}, v{vS}")
    for i in range(8):
        a(f"v_cvt_pk_bf16_f32 v{PB+i}, v{SA+2*i}, v{SA+2*i+1}")
    a("s_waitcnt lgkmcnt(0)")
    if stamp: stamp_mark(a, 5)
    for dd in range(4):
        a(f"v_mfma_f32_16x16x32_bf16 {oa(dd)}, {vf(dd,0)}, {pb(0)}, 0")
    for dd in range(4):
        a(f"v_mfma_f32_16x16x32_bf16 {oa(dd)}, {vf(dd,1)}, {pb(1)}, {oa(dd)}")
    for dd in range(4):
        a(f"v_cvt_pk_bf16_f32 v{SA+2*dd}, v{OA+4*dd}, v{OA+4*dd+1}")
        a(f"v_cvt_pk_bf16_f32 v{SA+2*dd+1}, v{OA+4*dd+2}, v{OA+4*dd+3}")
        a(f"buffer_store_dwordx2 v[{SA+2*dd}:{SA+2*dd+1}], v{vSt}, s[{SRD_WS}:{SRD_WS+3}], s{sT2} offen offset:{dd*1024}")
    if stamp: stamp_end(a, sW)
    a.label(f"{name}_END")
    a("s_endpgm")
    return a

if __name__ == "__main__":
    a = gen_k1()
    a.fix_hazards(True)
    errs = a.verify_waits()
    print("wait errors:", len(errs)); [print(e) for e in errs[:30]]
    print("static/dynamic instruction counts:", a.count())
    open("k1_body.s", "w").write(a.text())

def k1_text(name, role=0, **kw):
    if role == "both":
        for r in (0, 1):
            a = gen_k1(name, role=r, **kw); a.fix_hazards(False)
            e = a.verify_waits(); assert not e, e[:5]
    a = gen_k1(name, role=role, **kw); a.fix_hazards(False)
    if role != "both":
        e = a.verify_waits(); assert not e, e[:5]
    return a.text()
```

```python
from gasm import *

def k2_lds(NWV=8, P=8): return NWV * max(P * 2048, 8192)

def gen_k2(name="k2", stamp=False, NWV=8, P=8, rot=True, no_compute=False, G=1, polW="", polO="", touch=0, hackO=False, hackW=False, odma_nc=False):
    a = Asm()
    a.ignore |= {('v', 12), ('v', 13)}
    NSTEP = 256 // NWV
    KROWS = 4096 // NWV
    WAVE_LDS = max(P * 2048, 8192)
    sWO, sWS, sOUT = 4, 6, 8
    SRD_W, SRD_O, SRD_OUT = 12, 16, 20
    sWV, sMT, sNT, sOffW, sOffO, sLB, sCnt, sT0, sT1, sK, sBaseW, sBaseO, sRot, sT2 = range(24, 38)
    GS = NSTEP // G
    TG = 4
    sTW, sTO, sTC = 38, 39, 40
    vDum = 12
    vLane, vVoffW, vVoffO, vWa0, vWa1, vT1, vT2, vT3, vT4, vRed, vOutA = 1, 2, 3, 4, 5, 6, 7, 8, 9, 10, 11
    if NWV == 16:
        ACC, WF, ORING, RD0, VB = 16, 48, 64, 64, 112
    else:
        ACC, WF, ORING, RD0, VB = 64, 96, 128, 128, 200
    def acc(nb): return f"v[{ACC+16*nb}:{ACC+16*nb+15}]"
    def wf(buf, nb, i=None):
        b = WF + buf * 8 + nb * 4
        return f"v[{b}:{b+3}]" if i is None else f"v[{b+2*i}:{b+2*i+1}]"
    def oreg(slot): return f"v[{ORING+4*slot}:{ORING+4*slot+3}]"

    if stamp: stamp_begin(a)
    a(f"""
    s_cmp_ge_u32 s2, 256
    s_cbranch_scc1 {name}_END
    s_load_dwordx2 s[{sWO}:{sWO+1}], s[0:1], 32
    s_load_dwordx2 s[{sWS}:{sWS+1}], s[0:1], 56
    s_load_dwordx2 s[{sOUT}:{sOUT+1}], s[0:1], 40
    v_and_b32 v{vLane}, 63, v0
    v_lshrrev_b32 v{vT1}, 6, v0
    v_readfirstlane_b32 s{sWV}, v{vT1}
    s_and_b32 s{sT0}, s2, 1
    s_lshl_b32 s{sT0}, s{sT0}, 3
    s_bfe_u32 s{sT1}, s2, 0x30003
    s_add_u32 s{sMT}, s{sT0}, s{sT1}
    s_bfe_u32 s{sT0}, s2, 0x20001
    s_lshl_b32 s{sT0}, s{sT0}, 2
    s_lshr_b32 s{sT1}, s2, 6
    s_add_u32 s{sNT}, s{sT0}, s{sT1}
    v_lshrrev_b32 v{vT1}, 4, v{vLane}
    v_bfe_u32 v{vT2}, v{vLane}, 3, 1
    v_lshl_add_u32 v{vT2}, v{vT1}, 1, v{vT2}
    v_bfe_u32 v{vT3}, v{vLane}, 2, 1
    v_and_b32 v{vT4}, 1, v{vT1}
    v_xor_b32 v{vT3}, v{vT3}, v{vT4}
    v_and_b32 v{vT4}, 3, v{vLane}
    v_lshlrev_b32 v{vVoffW}, 11, v{vT2}
    v_lshl_add_u32 v{vVoffW}, v{vT3}, 6, v{vVoffW}
    v_lshl_add_u32 v{vVoffW}, v{vT4}, 4, v{vVoffW}
    v_lshlrev_b32 v{vVoffO}, 4, v{vLane}
    v_bfe_u32 v{vT1}, v{vLane}, 5, 1
    v_lshlrev_b32 v{vWa0}, 10, v{vT1}
    v_bfe_u32 v{vT1}, v{vLane}, 3, 1
    v_lshl_add_u32 v{vWa0}, v{vT1}, 8, v{vWa0}
    v_lshl_add_u32 v{vWa0}, v{vT1}, 6, v{vWa0}
    v_bfe_u32 v{vT1}, v{vLane}, 2, 1
    v_lshl_add_u32 v{vWa0}, v{vT1}, 7, v{vWa0}
    v_bfe_u32 v{vT1}, v{vLane}, 4, 1
    v_lshl_add_u32 v{vWa0}, v{vT1}, 5, v{vWa0}
    v_and_b32 v{vT1}, 3, v{vLane}
    v_lshl_add_u32 v{vWa0}, v{vT1}, 3, v{vWa0}
    s_mul_i32 s{sLB}, s{sWV}, {WAVE_LDS}
    v_add_u32 v{vWa0}, s{sLB}, v{vWa0}
    v_xor_b32 v{vWa1}, 64, v{vWa0}
    s_and_b32 s{sT0}, s{sMT}, 7
    s_and_b32 s{sT1}, s{sNT}, 3
    s_lshl_b32 s{sT1}, s{sT1}, 1
    s_add_u32 s{sT0}, s{sT0}, s{sT1}
    s_mul_i32 s{sRot}, s{sT0}, {GS // 8}
    s_and_b32 s{sRot}, s{sRot}, {GS - 1}
    s_mov_b32 s{sK}, 0
    """)
    if not rot: a(f"s_mov_b32 s{sRot}, 0")
    for i in range(32):
        a(f"v_mov_b32 v{ACC+i}, 0")
    a(f"""
    s_waitcnt lgkmcnt(0)
    s_mov_b32 s{SRD_W}, s{sWO}
    s_and_b32 s{SRD_W+1}, s{sWO+1}, 0xffff
    s_mov_b32 s{SRD_W+2}, 0x800000
    s_mov_b32 s{SRD_W+3}, 0x00020000
    s_mul_i32 s{sBaseW}, s{sWV}, {KROWS*2048 if not hackW else 0}
    s_lshl_b32 s{sT0}, s{sNT}, 7
    s_add_u32 s{sBaseW}, s{sBaseW}, s{sT0}
    s_lshl_b32 s{sT0}, s{sMT}, {18 if not hackO else 31}
    s_mul_i32 s{sT1}, s{sWV}, {NSTEP*1024}
    {"s_add_u32 s%d, s%d, s%d" % (sBaseO, sT0, sT1) if not hackO else "s_mov_b32 s%d, s%d" % (sBaseO, sT1)}
    s_mov_b32 s{SRD_O}, s{sWS}
    s_and_b32 s{SRD_O+1}, s{sWS+1}, 0xffff
    s_mov_b32 s{SRD_O+2}, 0x400000
    s_mov_b32 s{SRD_O+3}, 0x00020000
    s_mov_b32 s{SRD_OUT}, s{sOUT}
    s_and_b32 s{SRD_OUT+1}, s{sOUT+1}, 0xffff
    s_mov_b32 s{SRD_OUT+2}, 0x100000
    s_mov_b32 s{SRD_OUT+3}, 0x00020000
    """)
    def issue(slot):
        a(f"""
        s_add_u32 s{sT2}, s{sK}, s{sRot}
        s_and_b32 s{sT2}, s{sT2}, {GS-1}
        s_and_b32 s{sT0}, s{sK}, {(NSTEP-1) & ~(GS-1)}
        s_or_b32 s{sT2}, s{sT2}, s{sT0}
        s_lshl_b32 s{sT0}, s{sT2}, 15
        s_add_u32 s{sOffW}, s{sBaseW}, s{sT0}
        s_lshl_b32 s{sT1}, s{sT2}, 10
        s_add_u32 s{sOffO}, s{sBaseO}, s{sT1}
        s_add_u32 m0, s{sLB}, {slot*2048}
        {("buffer_load_dwordx4 %s, v%d, s[%d:%d], s%d offen %s" % (oreg(slot), vVoffO, SRD_O, SRD_O+3, sOffO, polO)) if not odma_nc else ("buffer_load_dwordx4 v%d, s[%d:%d], s%d offen lds" % (vVoffO, SRD_O, SRD_O+3, sOffO))}
        buffer_load_dwordx4 v{vVoffW}, s[{SRD_W}:{SRD_W+3}], s{sOffW} offen {polW} lds
        s_add_u32 s{sOffW}, s{sOffW}, 16384
        s_add_u32 m0, s{sLB}, {slot*2048+1024}
        s_add_u32 s{sK}, s{sK}, 1
        buffer_load_dwordx4 v{vVoffW}, s[{SRD_W}:{SRD_W+3}], s{sOffW} offen {polW} lds
        """)
    def do_touch(gdist):
        a(f"""
        s_add_u32 s{sT0}, s{sTC}, {gdist}
        s_lshl_b32 s{sT1}, s{sT0}, 17
        s_add_u32 s{sT1}, s{sT1}, s{sTW}
        buffer_load_dword v{vDum}, v{vVoffW}, s[{SRD_W}:{SRD_W+3}], s{sT1} offen
        s_lshl_b32 s{sT1}, s{sT0}, 12
        s_add_u32 s{sT1}, s{sT1}, s{sTO}
        buffer_load_dword v{vDum+1}, v{vVoffO}, s[{SRD_O}:{SRD_O+3}], s{sT1} offen
        s_add_u32 s{sTC}, s{sTC}, 1
        """)
    def trread(slot, buf):
        for nb in range(2):
            for i in range(2):
                a(f"ds_read_b64_tr_b16 {wf(buf, nb, i)}, v{vWa0 if nb == 0 else vWa1} offset:{slot*2048 + i*512}")
    seq = []
    if touch:
        a(f"""
        s_and_b32 s{sT0}, s{sMT}, 7
        s_lshl_b32 s{sT0}, s{sT0}, 14
        s_add_u32 s{sTW}, s{sBaseW}, s{sT0}
        s_and_b32 s{sT0}, s{sNT}, 3
        s_lshl_b32 s{sT0}, s{sT0}, 10
        s_add_u32 s{sTO}, s{sBaseO}, s{sT0}
        s_mov_b32 s{sTC}, 0
        """)
        for g0 in range(touch):
            a(f"s_sub_u32 s{sTC}, s{sTC}, {touch}")
            do_touch(touch)
            a(f"s_add_u32 s{sTC}, s{sTC}, {touch}")
        a(f"s_mov_b32 s{sTC}, 0")
    for s in range(P - 1): issue(s)
    a(f"s_waitcnt vmcnt({3*(P-2)})")
    if stamp: stamp_mark(a, 1)
    if not no_compute: trread(0, 0)
    a(f"s_mov_b32 s{sCnt}, {NSTEP // P}")
    a.label(f"{name}_LOOP")
    a.loop_begin("L", NSTEP // P)
    for st in range(P):
        if st == 1:
            a(f"""
            s_cmp_eq_u32 s{sCnt}, 1
            s_cselect_b32 s{SRD_W+2}, 0, s{SRD_W+2}
            s_cselect_b32 s{SRD_O+2}, 0, s{SRD_O+2}
            """)
        ntouch_after = 0
        if touch:
            if st == 0:
                a(f"""
                s_add_u32 s{sT0}, s{sTW}, 0x40000000
                s_add_u32 s{sT1}, s{sTO}, 0x40000000
                s_cmp_eq_u32 s{sCnt}, 1
                s_cselect_b32 s{sTW}, s{sT0}, s{sTW}
                s_cselect_b32 s{sTO}, s{sT1}, s{sTO}
                """)
            if st % TG == 0: do_touch(touch)
            ntouch_after = 2 * sum(1 for d in range(P - 2) if st - d >= 0 and (st - d) % TG == 0)
        issue((st - 1) % P)
        a(f"s_waitcnt vmcnt({3*(P-2) + ntouch_after})")
        if no_compute: continue
        trread((st + 1) % P, (st + 1) % 2)
        a("s_waitcnt lgkmcnt(4)")
        for nb in range(2):
            a(f"v_mfma_f32_32x32x16_bf16 {acc(nb)}, {wf(st % 2, nb)}, {oreg(st)}, {acc(nb)}")
    a(f"""
    s_sub_u32 s{sCnt}, s{sCnt}, 1
    s_cmp_lg_u32 s{sCnt}, 0
    s_cbranch_scc1 {name}_LOOP
    """)
    a.loop_end("L")
    if stamp: stamp_mark(a, 2)
    a(f"""
    s_waitcnt vmcnt(0) lgkmcnt(0)
    v_lshlrev_b32 v{vRed}, 4, v{vLane}
    v_add_u32 v{vT1}, s{sLB}, v{vRed}
    """)
    for q8 in range(8):
        a(f"ds_write_b128 v{vT1}, v[{ACC+4*q8}:{ACC+4*q8+3}] offset:{q8*1024}")
    NQ = max(1, 8 // NWV)
    a(f"""
    s_lshl_b32 s{sT0}, s{sWV}, {10 + (NQ.bit_length() - 1)}
    v_add_u32 v{vRed}, s{sT0}, v{vRed}
    """)
    nwin = (NWV * WAVE_LDS + 65535) // 65536
    vWin = [vRed] + [vT2, vT3, vT4][:nwin - 1]
    for i in range(1, nwin):
        a(f"v_add_u32 v{vWin[i]}, {i*65536}, v{vRed}")
    a(f"""
    s_waitcnt lgkmcnt(0)
    s_barrier
    """)
    RD = RD0
    if NWV > 8:
        a(f"s_cmp_ge_u32 s{sWV}, 8")
        a(f"s_cbranch_scc1 {name}_END")
    for wq in range(NWV):
        for e in range(NQ):
            off = wq * WAVE_LDS + e * 1024
            a(f"ds_read_b128 v[{RD+(wq*NQ+e)*4}:{RD+(wq*NQ+e)*4+3}], v{vWin[off // 65536]} offset:{off % 65536}")
    a(f"""
    v_and_b32 v{vOutA}, 31, v{vLane}
    v_lshlrev_b32 v{vOutA}, 11, v{vOutA}
    v_lshrrev_b32 v{vT1}, 5, v{vLane}
    v_lshl_add_u32 v{vOutA}, v{vT1}, 3, v{vOutA}
    s_lshl_b32 s{sT0}, s{sMT}, 16
    s_lshl_b32 s{sT1}, s{sNT}, 7
    s_add_u32 s{sT0}, s{sT0}, s{sT1}
    s_lshl_b32 s{sT1}, s{sWV}, {4 + (NQ.bit_length() - 1)}
    s_add_u32 s{sT0}, s{sT0}, s{sT1}
    """)
    a("s_waitcnt lgkmcnt(0)")
    for e in range(NQ):
        n = NWV
        while n > 1:
            h = n // 2
            for j in range(h):
                for r in range(4):
                    d = RD + (j * NQ + e) * 4 + r; s_ = RD + ((j + h) * NQ + e) * 4 + r
                    a(f"v_add_f32 v{d}, v{d}, v{s_}")
            n = h
        a(f"v_cvt_pk_bf16_f32 v{WF+2*e}, v{RD+e*4}, v{RD+e*4+1}")
        a(f"v_cvt_pk_bf16_f32 v{WF+2*e+1}, v{RD+e*4+2}, v{RD+e*4+3}")
        a(f"buffer_store_dwordx2 v[{WF+2*e}:{WF+2*e+1}], v{vOutA}, s[{SRD_OUT}:{SRD_OUT+3}], s{sT0} offen offset:{e*16}")
    if stamp: stamp_end(a, sWV, vb=VB)
    a.label(f"{name}_END")
    a("s_endpgm")
    return a

if __name__ == "__main__":
    for NWV in (4, 8):
        a = gen_k2(NWV=NWV)
        a.fix_hazards(True)
        errs = a.verify_waits()
        print("NWV", NWV, "wait errors:", len(errs)); [print(e) for e in errs[:20]]
        print("static/dynamic instruction counts:", a.count())
    open("k2_body.s", "w").write(a.text())
```

```python
from gasm import *

D = 4
SLOT = 24576
KBASE = D * SLOT
VBASE = KBASE + 16384
K1_LDS = VBASE + 16384
XCH = 0
QBASE = 32768
NST = 16

def gen_k1(name="k1", stamp=False, rot=True, polW="", polX="", polKV="nt", role="both", no_dma=False, no_reads=False, no_mfma=False, no_bar=False, pf_wo=True):
    a = Asm()
    a.ignore |= {("v", 16)}
    SRD_X, SRD_WQ, SRD_K, SRD_V, SRD_WS = 16, 20, 24, 28, 32
    (sW, sB, sH, sRot, sStage, sOffW, sOffX, sBaseW, sBaseX, sLW, sLX, sCnt, sT0, sT1, sT2, sT3,
     sKV, sScale, sLog2e, sG, sDW, sOffW2) = range(36, 58)
    vLane = 1
    vDWq, vDX = 2, 3
    vA0, vA1 = 4, 7
    vB = {(0, 0, 0): 5, (0, 0, 1): 6, (0, 1, 0): 8, (0, 1, 1): 9,
          (1, 0, 0): 10, (1, 0, 1): 11, (1, 1, 0): 12, (1, 1, 1): 13}
    vT = [14, 15, 252, 253, 254, 255, 250, 251]
    AF = 16
    BF = 32
    ACC = 64
    def af(buf, tt, i=None):
        b = AF + 8 * buf + 4 * tt
        return f"v[{b}:{b+3}]" if i is None else f"v[{b+2*i}:{b+2*i+1}]"
    def bf(buf, tt, idx): b = BF + 16 * buf + 8 * tt + 4 * idx; return f"v[{b}:{b+3}]"
    def acc(idx): return f"v[{ACC+16*idx}:{ACC+16*idx+15}]"

    if stamp: stamp_begin(a)
    a(f"""
    s_cmp_ge_u32 s2, 256
    s_cbranch_scc1 {name}_END
    s_load_dwordx8 s[4:11], s[0:1], 0
    s_load_dwordx2 s[12:13], s[0:1], 56
    s_load_dwordx2 s[14:15], s[0:1], 32
    v_and_b32 v{vLane}, 63, v0
    v_lshrrev_b32 v{vT[0]}, 6, v0
    v_readfirstlane_b32 s{sW}, v{vT[0]}
    s_and_b32 s{sT0}, s2, 7
    s_lshl_b32 s{sT0}, s{sT0}, 2
    s_bfe_u32 s{sT1}, s2, 0x20003
    s_add_u32 s{sH}, s{sT0}, s{sT1}
    s_lshr_b32 s{sB}, s2, 5
    s_and_b32 s{sDW}, s{sW}, 3
    s_lshr_b32 s{sG}, s{sW}, 2
    s_and_b32 s{sT0}, s{sH}, 3
    s_lshl_b32 s{sT0}, s{sT0}, 1
    s_add_u32 s{sT0}, s{sT0}, s{sB}
    s_lshl_b32 s{sT0}, s{sT0}, 1
    s_and_b32 s{sRot}, s{sT0}, 15
    s_mov_b32 s{sStage}, 0
    s_lshl_b32 s{sBaseW}, s{sH}, 8
    s_lshl_b32 s{sBaseX}, s{sB}, 17
    s_lshl_b32 s{sLW}, s{sW}, 11
    s_lshl_b32 s{sLX}, s{sW}, 10
    s_add_u32 s{sLX}, s{sLX}, 16384
    s_lshl_b32 s{sT0}, s{sB}, 5
    s_add_u32 s{sT0}, s{sT0}, s{sH}
    s_lshl_b32 s{sKV}, s{sT0}, 14
    """)
    if not rot: a(f"s_mov_b32 s{sRot}, 0")
    t0, t1, t2, t3 = vT[0], vT[1], vT[2], vT[3]
    a(f"""
    v_lshrrev_b32 v{t0}, 4, v{vLane}
    v_and_b32 v{t1}, 15, v{vLane}
    v_lshlrev_b32 v{t2}, 2, v{t0}
    v_xor_b32 v{t1}, v{t1}, v{t2}
    v_lshlrev_b32 v{vDWq}, 13, v{t0}
    v_lshl_add_u32 v{vDWq}, v{t1}, 4, v{vDWq}
    s_lshl_b32 s{sT0}, s{sW}, 16
    v_add_u32 v{vDWq}, s{sT0}, v{vDWq}
    v_lshrrev_b32 v{t1}, 3, v{vLane}
    v_and_b32 v{t2}, 7, v{vLane}
    v_xor_b32 v{t2}, v{t2}, v{t0}
    s_and_b32 s{sT0}, s{sW}, 1
    s_lshl_b32 s{sT0}, s{sT0}, 2
    v_xor_b32 v{t2}, s{sT0}, v{t2}
    v_lshlrev_b32 v{vDX}, 11, v{t1}
    v_lshl_add_u32 v{vDX}, v{t2}, 4, v{vDX}
    s_lshl_b32 s{sT0}, s{sW}, 14
    v_add_u32 v{vDX}, s{sT0}, v{vDX}
    v_lshrrev_b32 v{t0}, 5, v{vLane}
    v_lshlrev_b32 v{vA0}, 11, v{t0}
    v_bfe_u32 v{t0}, v{vLane}, 2, 2
    v_lshl_add_u32 v{vA0}, v{t0}, 8, v{vA0}
    v_xor_b32 v{t0}, s{sDW}, v{t0}
    v_lshl_add_u32 v{vA0}, v{t0}, 6, v{vA0}
    v_bfe_u32 v{t0}, v{vLane}, 4, 1
    v_lshl_add_u32 v{vA0}, v{t0}, 5, v{vA0}
    v_and_b32 v{t0}, 3, v{vLane}
    v_lshl_add_u32 v{vA0}, v{t0}, 3, v{vA0}
    s_lshl_b32 s{sT0}, s{sG}, 13
    v_add_u32 v{vA0}, s{sT0}, v{vA0}
    v_add_u32 v{vA1}, 49152, v{vA0}
    v_and_b32 v{t0}, 31, v{vLane}
    v_lshlrev_b32 v{t0}, 7, v{t0}
    v_lshrrev_b32 v{t1}, 5, v{vLane}
    v_bfe_u32 v{t2}, v{vLane}, 1, 3
    v_xor_b32 v{t1}, v{t1}, v{t2}
    s_lshl_b32 s{sT0}, s{sG}, 2
    v_xor_b32 v{t1}, s{sT0}, v{t1}
    v_lshl_add_u32 v{t0}, v{t1}, 4, v{t0}
    s_lshl_b32 s{sT0}, s{sG}, 12
    v_add_u32 v{vB[(0,0,0)]}, s{sT0}, v{t0}
    v_xor_b32 v{vB[(1,0,0)]}, 32, v{vB[(0,0,0)]}
    v_xor_b32 v{vB[(0,1,0)]}, 4096, v{vB[(0,0,0)]}
    v_xor_b32 v{vB[(1,1,0)]}, 4096, v{vB[(1,0,0)]}
    """)
    for tt in range(2):
        for idx in range(2):
            a(f"v_add_u32 v{vB[(tt,idx,1)]}, 49152, v{vB[(tt,idx,0)]}")
    for i in range(32):
        a(f"v_mov_b32 v{ACC+i}, 0")
    for i in range(8): a(f"v_mov_b32 v{AF+8+i}, 0")
    for i in range(16): a(f"v_mov_b32 v{BF+16+i}, 0")
    a(f"""
    s_waitcnt lgkmcnt(0)
    s_mov_b32 s{SRD_X}, s4
    s_and_b32 s{SRD_X+1}, s5, 0xffff
    s_mov_b32 s{SRD_X+2}, 0x100000
    s_mov_b32 s{SRD_X+3}, 0x00020000
    s_mov_b32 s{SRD_WQ}, s10
    s_and_b32 s{SRD_WQ+1}, s11, 0xffff
    s_mov_b32 s{SRD_WQ+2}, 0x800000
    s_mov_b32 s{SRD_WQ+3}, 0x00020000
    """)
    def issue_part(slot, part):
        sb = slot * SLOT
        if no_dma: return
        if part == 0:
            a(f"""
            s_add_u32 s{sT0}, s{sStage}, s{sRot}
            s_and_b32 s{sT0}, s{sT0}, 15
            s_lshl_b32 s{sT1}, s{sT0}, 19
            s_add_u32 s{sOffW}, s{sBaseW}, s{sT1}
            s_add_u32 m0, s{sLW}, {sb}
            s_lshl_b32 s{sT3}, s{sT0}, 7
            buffer_load_dwordx4 v{vDWq}, s[{SRD_WQ}:{SRD_WQ+3}], s{sOffW} offen {polW} lds
            """)
        elif part == 1:
            a(f"""
            s_add_u32 s{sOffW2}, s{sOffW}, 32768
            s_add_u32 m0, s{sLW}, {sb + 1024}
            s_add_u32 s{sOffX}, s{sBaseX}, s{sT3}
            buffer_load_dwordx4 v{vDWq}, s[{SRD_WQ}:{SRD_WQ+3}], s{sOffW2} offen {polW} lds
            """)
        else:
            a(f"""
            s_add_u32 m0, s{sLX}, {sb}
            s_add_u32 s{sStage}, s{sStage}, 1
            buffer_load_dwordx4 v{vDX}, s[{SRD_X}:{SRD_X+3}], s{sOffX} offen {polX} lds
            """)
    def issue(slot):
        for part in range(3): issue_part(slot, part)
    for s in range(D - 1): issue(s)
    a(f"""
    s_mov_b32 s{SRD_K}, s6
    s_and_b32 s{SRD_K+1}, s7, 0xffff
    s_mov_b32 s{SRD_K+2}, 0x400000
    s_mov_b32 s{SRD_K+3}, 0x00020000
    s_mov_b32 s{SRD_V}, s8
    s_and_b32 s{SRD_V+1}, s9, 0xffff
    s_mov_b32 s{SRD_V+2}, 0x400000
    s_mov_b32 s{SRD_V+3}, 0x00020000
    s_mov_b32 s{SRD_WS}, s12
    s_and_b32 s{SRD_WS+1}, s13, 0xffff
    s_mov_b32 s{SRD_WS+2}, 0x400000
    s_mov_b32 s{SRD_WS+3}, 0x00020000
    v_lshrrev_b32 v{t0}, 4, v{vLane}
    v_and_b32 v{t1}, 15, v{vLane}
    v_lshlrev_b32 v{t2}, 8, v{t0}
    s_lshl_b32 s{sT0}, s{sW}, 11
    v_add_u32 v{t2}, s{sT0}, v{t2}
    v_xor_b32 v{t3}, v{t1}, v{t0}
    s_and_b32 s{sT0}, s{sW}, 1
    s_lshl_b32 s{sT0}, s{sT0}, 3
    v_xor_b32 v{t3}, s{sT0}, v{t3}
    v_lshl_add_u32 v246, v{t3}, 4, v{t2}
    v_xor_b32 v{t3}, 4, v{t3}
    v_lshl_add_u32 v247, v{t3}, 4, v{t2}
    v_add_u32 v247, 1024, v247
    v_lshlrev_b32 v{t3}, 1, v{t0}
    v_xor_b32 v{t3}, v{t1}, v{t3}
    v_lshl_add_u32 v248, v{t3}, 4, v{t2}
    v_xor_b32 v{t3}, 8, v{t3}
    v_lshl_add_u32 v249, v{t3}, 4, v{t2}
    v_add_u32 v249, 1024, v249
    s_mov_b32 s{sCnt}, {NST // D}
    """)
    if stamp: stamp_mark(a, 1)
    a.label(f"{name}_LOOP")
    a.loop_begin("L", NST // D)
    def kv_issue(sl, tag):
        srd = SRD_K if sl < 2 else SRD_V
        base = (KBASE if sl < 2 else VBASE) + (sl & 1) * 1024
        a(f"""
        s_cmp_lg_u32 s{sCnt}, {NST // D - 1}
        s_cbranch_scc1 {name}_NKV{sl}{tag}
        s_add_u32 m0, s{sLW}, {base}
        s_nop 0
        buffer_load_dwordx4 v{246+sl}, s[{srd}:{srd+3}], s{sKV} offen {polKV} lds
        """)
        a.label(f"{name}_NKV{sl}{tag}")
    def mfma1(buf, j):
        tt, idx = j >> 1, j & 1
        if not no_mfma: a(f"v_mfma_f32_32x32x16_bf16 {acc(idx)}, {af(buf,tt)}, {bf(buf,tt,idx)}, {acc(idx)}")
    for sl in range(D):
        win = sl >> 1; so = (sl & 1) * SLOT
        vA = vA0 if win == 0 else vA1
        buf = sl & 1
        a(f"s_waitcnt vmcnt({3*(D-2)})")
        if not no_bar: a("s_barrier")
        if stamp and sl == 0:
            a(f"s_cmp_lg_u32 s{sCnt}, {NST // D}")
            a(f"s_cbranch_scc1 {name}_SK1")
            stamp_mark(a, 2)
            a.label(f"{name}_SK1")
        if role == 3:
            mfma1(buf ^ 1, 0); mfma1(buf ^ 1, 1)
        for tt in range(2):
            if no_reads: break
            a(f"ds_read_b64_tr_b16 {af(buf,tt,0)}, v{vA} offset:{so + tt*4096}")
            a(f"ds_read_b64_tr_b16 {af(buf,tt,1)}, v{vA} offset:{so + tt*4096 + 1024}")
            a(f"ds_read_b128 {bf(buf,tt,0)}, v{vB[(tt,0,win)]} offset:{so + 16384}")
            a(f"ds_read_b128 {bf(buf,tt,1)}, v{vB[(tt,1,win)]} offset:{so + 16384}")
        if sl == 1:
            a(f"""
            s_add_u32 s{sT2}, s{sLW}, 0x28000
            s_add_u32 s{sT3}, s{sLX}, 0x28000
            s_cmp_eq_u32 s{sCnt}, 1
            s_cselect_b32 s{SRD_WQ+2}, 0, s{SRD_WQ+2}
            s_cselect_b32 s{SRD_X+2}, 0, s{SRD_X+2}
            s_cselect_b32 s{sLW}, s{sT2}, s{sLW}
            s_cselect_b32 s{sLX}, s{sT3}, s{sLX}
            """)
        if role == "both":
            a(f"""
            s_cmp_eq_u32 s{sG}, 0
            s_cbranch_scc0 {name}_G1_{sl}
            """)
            issue((sl + D - 1) % D); kv_issue(sl, "a")
            for j in range(4): mfma1(buf ^ 1, j)
            a(f"s_branch {name}_GJ_{sl}")
            a.label(f"{name}_G1_{sl}")
            for j in range(4): mfma1(buf ^ 1, j)
            issue((sl + D - 1) % D); kv_issue(sl, "b")
            a.label(f"{name}_GJ_{sl}")
        elif role == 0:
            issue((sl + D - 1) % D); kv_issue(sl, "a")
            for j in range(4): mfma1(buf ^ 1, j)
        elif role == 1:
            for j in range(4): mfma1(buf ^ 1, j)
            issue((sl + D - 1) % D); kv_issue(sl, "b")
        elif role == 3:
            issue((sl + D - 1) % D); kv_issue(sl, "d")
            mfma1(buf ^ 1, 2); mfma1(buf ^ 1, 3)
        elif role == 2:
            for j in range(3):
                mfma1(buf ^ 1, j); issue_part((sl + D - 1) % D, j)
            mfma1(buf ^ 1, 3); kv_issue(sl, "c")
        a("s_waitcnt lgkmcnt(0)")
    a(f"""
    s_sub_u32 s{sCnt}, s{sCnt}, 1
    s_cmp_lg_u32 s{sCnt}, 0
    s_cbranch_scc1 {name}_LOOP
    """)
    a.loop_end("L")
    for j in range(4): mfma1((D - 1) & 1, j)
    a("s_nop 15")
    if stamp: stamp_mark(a, 3)
    vX = vT[0]
    a("s_waitcnt vmcnt(0)")
    if pf_wo:
        a(f"""
        s_mov_b32 s{SRD_X}, s14
        s_and_b32 s{SRD_X+1}, s15, 0xffff
        s_mov_b32 s{SRD_X+2}, 0x800000
        s_mov_b32 s{SRD_X+3}, 0x00020000
        v_lshrrev_b32 v{vT[2]}, 2, v{vLane}
        v_lshlrev_b32 v{vT[2]}, 11, v{vT[2]}
        v_and_b32 v{vT[3]}, 3, v{vLane}
        v_lshl_add_u32 v{vT[2]}, v{vT[3]}, 7, v{vT[2]}
        s_bfe_u32 s{sT0}, s2, 0x20001
        s_lshl_b32 s{sT0}, s{sT0}, 9
        s_lshr_b32 s{sT1}, s2, 3
        s_lshl_b32 s{sT1}, s{sT1}, 18
        s_add_u32 s{sT0}, s{sT0}, s{sT1}
        s_lshl_b32 s{sT1}, s{sW}, 15
        s_add_u32 s{sT0}, s{sT0}, s{sT1}
        buffer_load_dword v16, v{vT[2]}, s[{SRD_X}:{SRD_X+3}], s{sT0} offen
        """)
    a(f"""
    v_lshlrev_b32 v{vX}, 4, v{vLane}
    s_lshl_b32 s{sT0}, s{sW}, 12
    v_add_u32 v{vT[1]}, s{sT0}, v{vX}
    """)
    for qd in range(4):
        a(f"ds_write_b128 v{vT[1]}, v[{ACC+16+4*qd}:{ACC+16+4*qd+3}] offset:{XCH + qd*1024}")
    a(f"""
    s_xor_b32 s{sT0}, s{sW}, 4
    s_lshl_b32 s{sT0}, s{sT0}, 12
    v_add_u32 v{vT[1]}, s{sT0}, v{vX}
    s_waitcnt lgkmcnt(0)
    s_barrier
    """)
    for qd in range(4):
        a(f"ds_read_b128 v[{ACC+16+4*qd}:{ACC+16+4*qd+3}], v{vT[1]} offset:{XCH + qd*1024}")
    a(f"""
    v_and_b32 v{vT[2]}, 31, v{vLane}
    v_lshlrev_b32 v{vT[2]}, 8, v{vT[2]}
    s_lshl_b32 s{sT0}, s{sG}, 13
    v_add_u32 v{vT[2]}, s{sT0}, v{vT[2]}
    v_and_b32 v{vT[3]}, 15, v{vLane}
    s_lshl_b32 s{sT0}, s{sDW}, 2
    v_xor_b32 v{vT[3]}, s{sT0}, v{vT[3]}
    v_lshl_add_u32 v{vT[2]}, v{vT[3]}, 4, v{vT[2]}
    v_lshrrev_b32 v{vT[3]}, 5, v{vLane}
    v_lshl_add_u32 v{vT[2]}, v{vT[3]}, 3, v{vT[2]}
    v_xor_b32 v{vT[3]}, 16, v{vT[2]}
    v_xor_b32 v{vT[4]}, 32, v{vT[2]}
    v_xor_b32 v{vT[5]}, 48, v{vT[2]}
    s_waitcnt lgkmcnt(0)
    """)
    for i in range(16):
        a(f"v_add_f32 v{ACC+i}, v{ACC+i}, v{ACC+16+i}")
    for i in range(8):
        a(f"v_cvt_pk_bf16_f32 v{ACC+16+i}, v{ACC+2*i}, v{ACC+2*i+1}")
    for aq in range(4):
        a(f"ds_write_b64 v{vT[2+aq]}, v[{ACC+16+2*aq}:{ACC+16+2*aq+1}] offset:{QBASE}")
    a("""
    s_waitcnt lgkmcnt(0)
    s_barrier
    """)
    if stamp: stamp_mark(a, 4)
    QF, KF, SA, VF, PB, OA = 96, 112, 176, 192, 224, 232
    vKQ = [2, 3, 4, 5]; vQa = [6, 7, 8, 9]; vVb = [10, 11, 12, 13]
    vM, vS, vTm, vSt = 246, 247, 248, 249
    def qf(ks): return f"v[{QF+4*ks}:{QF+4*ks+3}]"
    def kf(kb, ks): b = KF + 16 * kb + 4 * ks; return f"v[{b}:{b+3}]"
    def sa(kb): return f"v[{SA+4*kb}:{SA+4*kb+3}]"
    def vf(dd, j2, i=None):
        b = VF + 8 * dd + 4 * j2
        return f"v[{b}:{b+3}]" if i is None else f"v[{b+2*i}:{b+2*i+1}]"
    def pb(j2): return f"v[{PB+4*j2}:{PB+4*j2+3}]"
    def oa(dd): return f"v[{OA+4*dd}:{OA+4*dd+3}]"
    a(f"""
    v_and_b32 v{t0}, 15, v{vLane}
    v_lshrrev_b32 v{t1}, 4, v{vLane}
    v_xor_b32 v{t1}, v{t1}, v{t0}
    v_lshlrev_b32 v{t0}, 8, v{t0}
    v_lshl_add_u32 v{t0}, v{t1}, 4, v{t0}
    v_add_u32 v{vKQ[0]}, {KBASE}, v{t0}
    v_xor_b32 v{vKQ[1]}, 64, v{vKQ[0]}
    v_xor_b32 v{vKQ[2]}, 128, v{vKQ[0]}
    v_xor_b32 v{vKQ[3]}, 192, v{vKQ[0]}
    s_lshl_b32 s{sT0}, s{sDW}, 12
    s_add_u32 s{sT0}, s{sT0}, {QBASE}
    v_add_u32 v{vQa[0]}, s{sT0}, v{t0}
    v_xor_b32 v{vQa[1]}, 64, v{vQa[0]}
    v_xor_b32 v{vQa[2]}, 128, v{vQa[0]}
    v_xor_b32 v{vQa[3]}, 192, v{vQa[0]}
    """)
    for ks in range(4):
        a(f"ds_read_b128 {qf(ks)}, v{vQa[ks]}")
    for kb in range(2):
        for ks in range(4):
            a(f"ds_read_b128 {kf(kb,ks)}, v{vKQ[ks]} offset:{kb*4096}")
    a(f"""
    v_lshrrev_b32 v{t0}, 2, v{vLane}
    v_lshlrev_b32 v{t1}, 8, v{t0}
    v_bfe_u32 v{t2}, v{vLane}, 4, 1
    v_lshlrev_b32 v{t2}, 3, v{t2}
    v_bfe_u32 v{t3}, v{vLane}, 2, 2
    v_lshl_add_u32 v{t2}, v{t3}, 1, v{t2}
    v_lshl_add_u32 v{t1}, v{t2}, 4, v{t1}
    v_and_b32 v{t3}, 3, v{vLane}
    v_lshl_add_u32 v{t1}, v{t3}, 3, v{t1}
    s_lshl_b32 s{sT0}, s{sG}, 7
    v_xor_b32 v{t1}, s{sT0}, v{t1}
    v_add_u32 v{vVb[0]}, {VBASE}, v{t1}
    v_xor_b32 v{vVb[1]}, 32, v{vVb[0]}
    v_xor_b32 v{vVb[2]}, 64, v{vVb[0]}
    v_xor_b32 v{vVb[3]}, 96, v{vVb[0]}
    """)
    def mfma_s(kb, ks, first):
        c = "0" if first else sa(kb)
        a(f"v_mfma_f32_16x16x32_bf16 {sa(kb)}, {kf(kb,ks)}, {qf(ks)}, {c}")
    a("s_waitcnt lgkmcnt(4)")
    for ks in range(4): mfma_s(0, ks, ks == 0)
    for ks in range(4):
        a(f"ds_read_b128 {kf(2,ks)}, v{vKQ[ks]} offset:{2*4096}")
    a("s_waitcnt lgkmcnt(4)")
    for ks in range(4): mfma_s(1, ks, ks == 0)
    for ks in range(4):
        a(f"ds_read_b128 {kf(3,ks)}, v{vKQ[ks]} offset:{3*4096}")
    a("s_waitcnt lgkmcnt(4)")
    for ks in range(4): mfma_s(2, ks, ks == 0)
    for dd in range(2):
        for j2 in range(2):
            for i in range(2):
                a(f"ds_read_b64_tr_b16 {vf(dd,j2,i)}, v{vVb[dd]} offset:{j2*8192 + i*4096}")
    a("s_waitcnt lgkmcnt(8)")
    for ks in range(4): mfma_s(3, ks, ks == 0)
    a(f"""
    v_and_b32 v{t0}, 15, v{vLane}
    v_lshrrev_b32 v{t1}, 5, v{vLane}
    v_lshl_add_u32 v{t0}, v{t1}, 5, v{t0}
    v_lshlrev_b32 v{vSt}, 4, v{t0}
    v_bfe_u32 v{t1}, v{vLane}, 4, 1
    v_lshl_add_u32 v{vSt}, v{t1}, 3, v{vSt}
    s_and_b32 s{sT0}, s{sDW}, 1
    s_lshl_b32 s{sT0}, s{sT0}, 8
    v_add_u32 v{vSt}, s{sT0}, v{vSt}
    s_lshl_b32 s{sT0}, s{sB}, 1
    s_lshr_b32 s{sT1}, s{sDW}, 1
    s_add_u32 s{sT0}, s{sT0}, s{sT1}
    s_lshl_b32 s{sT0}, s{sT0}, 8
    s_lshl_b32 s{sT1}, s{sH}, 3
    s_add_u32 s{sT0}, s{sT0}, s{sT1}
    s_lshl_b32 s{sT1}, s{sG}, 2
    s_add_u32 s{sT0}, s{sT0}, s{sT1}
    s_lshl_b32 s{sT2}, s{sT0}, 10
    s_mov_b32 s{sScale}, 0x3db504f3
    s_mov_b32 s{sLog2e}, 0x3fb8aa3b
    """)
    for kb in range(4):
        S = [SA + 4 * kb + r for r in range(4)]
        a(f"""
        v_cvt_pk_bf16_f32 v{t0}, v{S[0]}, v{S[1]}
        v_cvt_pk_bf16_f32 v{t1}, v{S[2]}, v{S[3]}
        v_lshlrev_b32 v{S[0]}, 16, v{t0}
        v_and_b32 v{S[1]}, 0xffff0000, v{t0}
        v_lshlrev_b32 v{S[2]}, 16, v{t1}
        v_and_b32 v{S[3]}, 0xffff0000, v{t1}
        v_mul_f32 v{S[0]}, s{sScale}, v{S[0]}
        v_mul_f32 v{S[1]}, s{sScale}, v{S[1]}
        v_mul_f32 v{S[2]}, s{sScale}, v{S[2]}
        v_mul_f32 v{S[3]}, s{sScale}, v{S[3]}
        v_cvt_pk_bf16_f32 v{t0}, v{S[0]}, v{S[1]}
        v_cvt_pk_bf16_f32 v{t1}, v{S[2]}, v{S[3]}
        v_lshlrev_b32 v{S[0]}, 16, v{t0}
        v_and_b32 v{S[1]}, 0xffff0000, v{t0}
        v_lshlrev_b32 v{S[2]}, 16, v{t1}
        v_and_b32 v{S[3]}, 0xffff0000, v{t1}
        """)
    a(f"v_max3_f32 v{vM}, v{SA}, v{SA+1}, v{SA+2}")
    for i in range(3, 15, 2):
        a(f"v_max3_f32 v{vM}, v{vM}, v{SA+i}, v{SA+i+1}")
    a(f"v_max_f32 v{vM}, v{vM}, v{SA+15}")
    for sw in ("v_permlane16_swap_b32", "v_permlane32_swap_b32"):
        a(f"""
        v_mov_b32 v{vTm}, v{vM}
        {sw} v{vM}, v{vTm}
        v_max_f32 v{vM}, v{vM}, v{vTm}
        """)
    a(f"v_mul_f32 v{vM}, s{sLog2e}, v{vM}")
    for i in range(16):
        a(f"v_fma_f32 v{SA+i}, v{SA+i}, s{sLog2e}, -v{vM}")
    for i in range(16):
        a(f"v_exp_f32 v{SA+i}, v{SA+i}")
    for dd in range(2, 4):
        for j2 in range(2):
            for i in range(2):
                a(f"ds_read_b64_tr_b16 {vf(dd,j2,i)}, v{vVb[dd]} offset:{j2*8192 + i*4096}")
    a(f"v_add_f32 v{vS}, v{SA}, v{SA+1}")
    for i in range(2, 16):
        a(f"v_add_f32 v{vS}, v{vS}, v{SA+i}")
    for sw in ("v_permlane16_swap_b32", "v_permlane32_swap_b32"):
        a(f"""
        v_mov_b32 v{vTm}, v{vS}
        {sw} v{vS}, v{vTm}
        v_add_f32 v{vS}, v{vS}, v{vTm}
        """)
    a(f"v_rcp_f32 v{vS}, v{vS}")
    for i in range(16):
        a(f"v_mul_f32 v{SA+i}, v{SA+i}, v{vS}")
    for i in range(8):
        a(f"v_cvt_pk_bf16_f32 v{PB+i}, v{SA+2*i}, v{SA+2*i+1}")
    a("s_waitcnt lgkmcnt(0)")
    if stamp: stamp_mark(a, 5)
    for dd in range(4):
        a(f"v_mfma_f32_16x16x32_bf16 {oa(dd)}, {vf(dd,0)}, {pb(0)}, 0")
    for dd in range(4):
        a(f"v_mfma_f32_16x16x32_bf16 {oa(dd)}, {vf(dd,1)}, {pb(1)}, {oa(dd)}")
    for dd in range(4):
        a(f"v_cvt_pk_bf16_f32 v{SA+2*dd}, v{OA+4*dd}, v{OA+4*dd+1}")
        a(f"v_cvt_pk_bf16_f32 v{SA+2*dd+1}, v{OA+4*dd+2}, v{OA+4*dd+3}")
        a(f"buffer_store_dwordx2 v[{SA+2*dd}:{SA+2*dd+1}], v{vSt}, s[{SRD_WS}:{SRD_WS+3}], s{sT2} offen offset:{dd*1024}")
    if stamp: stamp_end(a, sW)
    a.label(f"{name}_END")
    a("s_endpgm")
    return a

if __name__ == "__main__":
    a = gen_k1()
    a.fix_hazards(True)
    errs = a.verify_waits()
    print("wait errors:", len(errs)); [print(e) for e in errs[:30]]
    print("static/dynamic instruction counts:", a.count())
    open("k1_body.s", "w").write(a.text())

def k1_text(name, role=0, **kw):
    if role == "both":
        for r in (0, 1):
            a = gen_k1(name, role=r, **kw); a.fix_hazards(False)
            e = a.verify_waits(); assert not e, e[:5]
    a = gen_k1(name, role=role, **kw); a.fix_hazards(False)
    if role != "both":
        e = a.verify_waits(); assert not e, e[:5]
    return a.text()
```

```python
from gasm import *
from k1_attn import emit_attention

D = 4
SLOT = 24576
KBASE = D * SLOT
VBASE = KBASE + 16384
K1_LDS = VBASE + 16384
XCH = 0
QBASE = 32768
NST = 16

def gen_k1(name="k1", stamp=False, rot=True, polW="", polX="", polKV="nt", role="both", no_dma=False, no_reads=False, no_mfma=False, no_bar=False, pf_wo=True):
    a = Asm()
    a.ignore |= {("v", 16)}
    SRD_X, SRD_WQ, SRD_K, SRD_V, SRD_WS = 16, 20, 24, 28, 32
    (sW, sB, sH, sRot, sStage, sOffW, sOffX, sBaseW, sBaseX, sLW, sLX, sCnt, sT0, sT1, sT2, sT3,
     sKV, sScale, sLog2e, sG, sDW, sOffW2) = range(36, 58)
    vLane = 1
    vDWq, vDX = 2, 3
    vA0, vA1 = 4, 7
    vB = {(0, 0, 0): 5, (0, 0, 1): 6, (0, 1, 0): 8, (0, 1, 1): 9,
          (1, 0, 0): 10, (1, 0, 1): 11, (1, 1, 0): 12, (1, 1, 1): 13}
    vT = [14, 15, 252, 253, 254, 255, 250, 251]
    AF = 16
    BF = 32
    ACC = 64
    def af(buf, tt, i=None):
        b = AF + 8 * buf + 4 * tt
        return f"v[{b}:{b+3}]" if i is None else f"v[{b+2*i}:{b+2*i+1}]"
    def bf(buf, tt, idx): b = BF + 16 * buf + 8 * tt + 4 * idx; return f"v[{b}:{b+3}]"
    def acc(idx): return f"v[{ACC+16*idx}:{ACC+16*idx+15}]"

    if stamp: stamp_begin(a)
    a(f"""
    s_cmp_ge_u32 s2, 256
    s_cbranch_scc1 {name}_END
    s_load_dwordx8 s[4:11], s[0:1], 0
    s_load_dwordx2 s[12:13], s[0:1], 56
    s_load_dwordx2 s[14:15], s[0:1], 32
    v_and_b32 v{vLane}, 63, v0
    v_lshrrev_b32 v{vT[0]}, 6, v0
    v_readfirstlane_b32 s{sW}, v{vT[0]}
    s_and_b32 s{sT0}, s2, 7
    s_lshl_b32 s{sT0}, s{sT0}, 2
    s_bfe_u32 s{sT1}, s2, 0x20003
    s_add_u32 s{sH}, s{sT0}, s{sT1}
    s_lshr_b32 s{sB}, s2, 5
    s_and_b32 s{sDW}, s{sW}, 3
    s_lshr_b32 s{sG}, s{sW}, 2
    s_and_b32 s{sT0}, s{sH}, 3
    s_lshl_b32 s{sT0}, s{sT0}, 1
    s_add_u32 s{sT0}, s{sT0}, s{sB}
    s_lshl_b32 s{sT0}, s{sT0}, 1
    s_and_b32 s{sRot}, s{sT0}, 15
    s_mov_b32 s{sStage}, 0
    s_lshl_b32 s{sBaseW}, s{sH}, 8
    s_lshl_b32 s{sBaseX}, s{sB}, 17
    s_lshl_b32 s{sLW}, s{sW}, 11
    s_lshl_b32 s{sLX}, s{sW}, 10
    s_add_u32 s{sLX}, s{sLX}, 16384
    s_lshl_b32 s{sT0}, s{sB}, 5
    s_add_u32 s{sT0}, s{sT0}, s{sH}
    s_lshl_b32 s{sKV}, s{sT0}, 14
    """)
    if not rot: a(f"s_mov_b32 s{sRot}, 0")
    t0, t1, t2, t3 = vT[0], vT[1], vT[2], vT[3]
    a(f"""
    v_lshrrev_b32 v{t0}, 4, v{vLane}
    v_and_b32 v{t1}, 15, v{vLane}
    v_lshlrev_b32 v{t2}, 2, v{t0}
    v_xor_b32 v{t1}, v{t1}, v{t2}
    v_lshlrev_b32 v{vDWq}, 13, v{t0}
    v_lshl_add_u32 v{vDWq}, v{t1}, 4, v{vDWq}
    s_lshl_b32 s{sT0}, s{sW}, 16
    v_add_u32 v{vDWq}, s{sT0}, v{vDWq}
    v_lshrrev_b32 v{t1}, 3, v{vLane}
    v_and_b32 v{t2}, 7, v{vLane}
    v_xor_b32 v{t2}, v{t2}, v{t0}
    s_and_b32 s{sT0}, s{sW}, 1
    s_lshl_b32 s{sT0}, s{sT0}, 2
    v_xor_b32 v{t2}, s{sT0}, v{t2}
    v_lshlrev_b32 v{vDX}, 11, v{t1}
    v_lshl_add_u32 v{vDX}, v{t2}, 4, v{vDX}
    s_lshl_b32 s{sT0}, s{sW}, 14
    v_add_u32 v{vDX}, s{sT0}, v{vDX}
    v_lshrrev_b32 v{t0}, 5, v{vLane}
    v_lshlrev_b32 v{vA0}, 11, v{t0}
    v_bfe_u32 v{t0}, v{vLane}, 2, 2
    v_lshl_add_u32 v{vA0}, v{t0}, 8, v{vA0}
    v_xor_b32 v{t0}, s{sDW}, v{t0}
    v_lshl_add_u32 v{vA0}, v{t0}, 6, v{vA0}
    v_bfe_u32 v{t0}, v{vLane}, 4, 1
    v_lshl_add_u32 v{vA0}, v{t0}, 5, v{vA0}
    v_and_b32 v{t0}, 3, v{vLane}
    v_lshl_add_u32 v{vA0}, v{t0}, 3, v{vA0}
    s_lshl_b32 s{sT0}, s{sG}, 13
    v_add_u32 v{vA0}, s{sT0}, v{vA0}
    v_add_u32 v{vA1}, 49152, v{vA0}
    v_and_b32 v{t0}, 31, v{vLane}
    v_lshlrev_b32 v{t0}, 7, v{t0}
    v_lshrrev_b32 v{t1}, 5, v{vLane}
    v_bfe_u32 v{t2}, v{vLane}, 1, 3
    v_xor_b32 v{t1}, v{t1}, v{t2}
    s_lshl_b32 s{sT0}, s{sG}, 2
    v_xor_b32 v{t1}, s{sT0}, v{t1}
    v_lshl_add_u32 v{t0}, v{t1}, 4, v{t0}
    s_lshl_b32 s{sT0}, s{sG}, 12
    v_add_u32 v{vB[(0,0,0)]}, s{sT0}, v{t0}
    v_xor_b32 v{vB[(1,0,0)]}, 32, v{vB[(0,0,0)]}
    v_xor_b32 v{vB[(0,1,0)]}, 4096, v{vB[(0,0,0)]}
    v_xor_b32 v{vB[(1,1,0)]}, 4096, v{vB[(1,0,0)]}
    """)
    for tt in range(2):
        for idx in range(2):
            a(f"v_add_u32 v{vB[(tt,idx,1)]}, 49152, v{vB[(tt,idx,0)]}")
    for i in range(32):
        a(f"v_mov_b32 v{ACC+i}, 0")
    for i in range(8): a(f"v_mov_b32 v{AF+8+i}, 0")
    for i in range(16): a(f"v_mov_b32 v{BF+16+i}, 0")
    a(f"""
    s_waitcnt lgkmcnt(0)
    s_mov_b32 s{SRD_X}, s4
    s_and_b32 s{SRD_X+1}, s5, 0xffff
    s_mov_b32 s{SRD_X+2}, 0x100000
    s_mov_b32 s{SRD_X+3}, 0x00020000
    s_mov_b32 s{SRD_WQ}, s10
    s_and_b32 s{SRD_WQ+1}, s11, 0xffff
    s_mov_b32 s{SRD_WQ+2}, 0x800000
    s_mov_b32 s{SRD_WQ+3}, 0x00020000
    """)
    def issue_part(slot, part):
        sb = slot * SLOT
        if no_dma: return
        if part == 0:
            a(f"""
            s_add_u32 s{sT0}, s{sStage}, s{sRot}
            s_and_b32 s{sT0}, s{sT0}, 15
            s_lshl_b32 s{sT1}, s{sT0}, 19
            s_add_u32 s{sOffW}, s{sBaseW}, s{sT1}
            s_add_u32 m0, s{sLW}, {sb}
            s_lshl_b32 s{sT3}, s{sT0}, 7
            buffer_load_dwordx4 v{vDWq}, s[{SRD_WQ}:{SRD_WQ+3}], s{sOffW} offen {polW} lds
            """)
        elif part == 1:
            a(f"""
            s_add_u32 s{sOffW2}, s{sOffW}, 32768
            s_add_u32 m0, s{sLW}, {sb + 1024}
            s_add_u32 s{sOffX}, s{sBaseX}, s{sT3}
            buffer_load_dwordx4 v{vDWq}, s[{SRD_WQ}:{SRD_WQ+3}], s{sOffW2} offen {polW} lds
            """)
        else:
            a(f"""
            s_add_u32 m0, s{sLX}, {sb}
            s_add_u32 s{sStage}, s{sStage}, 1
            buffer_load_dwordx4 v{vDX}, s[{SRD_X}:{SRD_X+3}], s{sOffX} offen {polX} lds
            """)
    def issue(slot):
        for part in range(3): issue_part(slot, part)
    for s in range(D - 1): issue(s)
    a(f"""
    s_mov_b32 s{SRD_K}, s6
    s_and_b32 s{SRD_K+1}, s7, 0xffff
    s_mov_b32 s{SRD_K+2}, 0x400000
    s_mov_b32 s{SRD_K+3}, 0x00020000
    s_mov_b32 s{SRD_V}, s8
    s_and_b32 s{SRD_V+1}, s9, 0xffff
    s_mov_b32 s{SRD_V+2}, 0x400000
    s_mov_b32 s{SRD_V+3}, 0x00020000
    s_mov_b32 s{SRD_WS}, s12
    s_and_b32 s{SRD_WS+1}, s13, 0xffff
    s_mov_b32 s{SRD_WS+2}, 0x400000
    s_mov_b32 s{SRD_WS+3}, 0x00020000
    v_lshrrev_b32 v{t0}, 4, v{vLane}
    v_and_b32 v{t1}, 15, v{vLane}
    v_lshlrev_b32 v{t2}, 8, v{t0}
    s_lshl_b32 s{sT0}, s{sW}, 11
    v_add_u32 v{t2}, s{sT0}, v{t2}
    v_xor_b32 v{t3}, v{t1}, v{t0}
    s_and_b32 s{sT0}, s{sW}, 1
    s_lshl_b32 s{sT0}, s{sT0}, 3
    v_xor_b32 v{t3}, s{sT0}, v{t3}
    v_lshl_add_u32 v246, v{t3}, 4, v{t2}
    v_xor_b32 v{t3}, 4, v{t3}
    v_lshl_add_u32 v247, v{t3}, 4, v{t2}
    v_add_u32 v247, 1024, v247
    v_lshlrev_b32 v{t3}, 1, v{t0}
    v_xor_b32 v{t3}, v{t1}, v{t3}
    v_lshl_add_u32 v248, v{t3}, 4, v{t2}
    v_xor_b32 v{t3}, 8, v{t3}
    v_lshl_add_u32 v249, v{t3}, 4, v{t2}
    v_add_u32 v249, 1024, v249
    s_mov_b32 s{sCnt}, {NST // D}
    """)
    if stamp: stamp_mark(a, 1)
    a.label(f"{name}_LOOP")
    a.loop_begin("L", NST // D)
    def kv_issue(sl, tag):
        srd = SRD_K if sl < 2 else SRD_V
        base = (KBASE if sl < 2 else VBASE) + (sl & 1) * 1024
        a(f"""
        s_cmp_lg_u32 s{sCnt}, {NST // D - 1}
        s_cbranch_scc1 {name}_NKV{sl}{tag}
        s_add_u32 m0, s{sLW}, {base}
        s_nop 0
        buffer_load_dwordx4 v{246+sl}, s[{srd}:{srd+3}], s{sKV} offen {polKV} lds
        """)
        a.label(f"{name}_NKV{sl}{tag}")
    def mfma1(buf, j):
        tt, idx = j >> 1, j & 1
        if not no_mfma: a(f"v_mfma_f32_32x32x16_bf16 {acc(idx)}, {af(buf,tt)}, {bf(buf,tt,idx)}, {acc(idx)}")
    for sl in range(D):
        win = sl >> 1; so = (sl & 1) * SLOT
        vA = vA0 if win == 0 else vA1
        buf = sl & 1
        a(f"s_waitcnt vmcnt({3*(D-2)})")
        if not no_bar: a("s_barrier")
        if stamp and sl == 0:
            a(f"s_cmp_lg_u32 s{sCnt}, {NST // D}")
            a(f"s_cbranch_scc1 {name}_SK1")
            stamp_mark(a, 2)
            a.label(f"{name}_SK1")
        if role == 3:
            mfma1(buf ^ 1, 0); mfma1(buf ^ 1, 1)
        for tt in range(2):
            if no_reads: break
            a(f"ds_read_b64_tr_b16 {af(buf,tt,0)}, v{vA} offset:{so + tt*4096}")
            a(f"ds_read_b64_tr_b16 {af(buf,tt,1)}, v{vA} offset:{so + tt*4096 + 1024}")
            a(f"ds_read_b128 {bf(buf,tt,0)}, v{vB[(tt,0,win)]} offset:{so + 16384}")
            a(f"ds_read_b128 {bf(buf,tt,1)}, v{vB[(tt,1,win)]} offset:{so + 16384}")
        if sl == 1:
            a(f"""
            s_add_u32 s{sT2}, s{sLW}, 0x28000
            s_add_u32 s{sT3}, s{sLX}, 0x28000
            s_cmp_eq_u32 s{sCnt}, 1
            s_cselect_b32 s{SRD_WQ+2}, 0, s{SRD_WQ+2}
            s_cselect_b32 s{SRD_X+2}, 0, s{SRD_X+2}
            s_cselect_b32 s{sLW}, s{sT2}, s{sLW}
            s_cselect_b32 s{sLX}, s{sT3}, s{sLX}
            """)
        if role == "both":
            a(f"""
            s_cmp_eq_u32 s{sG}, 0
            s_cbranch_scc0 {name}_G1_{sl}
            """)
            issue((sl + D - 1) % D); kv_issue(sl, "a")
            for j in range(4): mfma1(buf ^ 1, j)
            a(f"s_branch {name}_GJ_{sl}")
            a.label(f"{name}_G1_{sl}")
            for j in range(4): mfma1(buf ^ 1, j)
            issue((sl + D - 1) % D); kv_issue(sl, "b")
            a.label(f"{name}_GJ_{sl}")
        elif role == 0:
            issue((sl + D - 1) % D); kv_issue(sl, "a")
            for j in range(4): mfma1(buf ^ 1, j)
        elif role == 1:
            for j in range(4): mfma1(buf ^ 1, j)
            issue((sl + D - 1) % D); kv_issue(sl, "b")
        elif role == 3:
            issue((sl + D - 1) % D); kv_issue(sl, "d")
            mfma1(buf ^ 1, 2); mfma1(buf ^ 1, 3)
        elif role == 2:
            for j in range(3):
                mfma1(buf ^ 1, j); issue_part((sl + D - 1) % D, j)
            mfma1(buf ^ 1, 3); kv_issue(sl, "c")
        a("s_waitcnt lgkmcnt(0)")
    a(f"""
    s_sub_u32 s{sCnt}, s{sCnt}, 1
    s_cmp_lg_u32 s{sCnt}, 0
    s_cbranch_scc1 {name}_LOOP
    """)
    a.loop_end("L")
    for j in range(4): mfma1((D - 1) & 1, j)
    a("s_nop 15")
    if stamp: stamp_mark(a, 3)
    vX = vT[0]
    a("s_waitcnt vmcnt(0)")
    if pf_wo:
        a(f"""
        s_mov_b32 s{SRD_X}, s14
        s_and_b32 s{SRD_X+1}, s15, 0xffff
        s_mov_b32 s{SRD_X+2}, 0x800000
        s_mov_b32 s{SRD_X+3}, 0x00020000
        v_lshrrev_b32 v{vT[2]}, 2, v{vLane}
        v_lshlrev_b32 v{vT[2]}, 11, v{vT[2]}
        v_and_b32 v{vT[3]}, 3, v{vLane}
        v_lshl_add_u32 v{vT[2]}, v{vT[3]}, 7, v{vT[2]}
        s_bfe_u32 s{sT0}, s2, 0x20001
        s_lshl_b32 s{sT0}, s{sT0}, 9
        s_lshr_b32 s{sT1}, s2, 3
        s_lshl_b32 s{sT1}, s{sT1}, 18
        s_add_u32 s{sT0}, s{sT0}, s{sT1}
        s_lshl_b32 s{sT1}, s{sW}, 15
        s_add_u32 s{sT0}, s{sT0}, s{sT1}
        buffer_load_dword v16, v{vT[2]}, s[{SRD_X}:{SRD_X+3}], s{sT0} offen
        """)
    a(f"""
    v_lshlrev_b32 v{vX}, 4, v{vLane}
    s_lshl_b32 s{sT0}, s{sW}, 12
    v_add_u32 v{vT[1]}, s{sT0}, v{vX}
    """)
    for qd in range(4):
        a(f"ds_write_b128 v{vT[1]}, v[{ACC+16+4*qd}:{ACC+16+4*qd+3}] offset:{XCH + qd*1024}")
    a(f"""
    s_xor_b32 s{sT0}, s{sW}, 4
    s_lshl_b32 s{sT0}, s{sT0}, 12
    v_add_u32 v{vT[1]}, s{sT0}, v{vX}
    s_waitcnt lgkmcnt(0)
    s_barrier
    """)
    for qd in range(4):
        a(f"ds_read_b128 v[{ACC+16+4*qd}:{ACC+16+4*qd+3}], v{vT[1]} offset:{XCH + qd*1024}")
    a(f"""
    v_and_b32 v{vT[2]}, 31, v{vLane}
    v_lshlrev_b32 v{vT[2]}, 8, v{vT[2]}
    s_lshl_b32 s{sT0}, s{sG}, 13
    v_add_u32 v{vT[2]}, s{sT0}, v{vT[2]}
    v_and_b32 v{vT[3]}, 15, v{vLane}
    s_lshl_b32 s{sT0}, s{sDW}, 2
    v_xor_b32 v{vT[3]}, s{sT0}, v{vT[3]}
    v_lshl_add_u32 v{vT[2]}, v{vT[3]}, 4, v{vT[2]}
    v_lshrrev_b32 v{vT[3]}, 5, v{vLane}
    v_lshl_add_u32 v{vT[2]}, v{vT[3]}, 3, v{vT[2]}
    v_xor_b32 v{vT[3]}, 16, v{vT[2]}
    v_xor_b32 v{vT[4]}, 32, v{vT[2]}
    v_xor_b32 v{vT[5]}, 48, v{vT[2]}
    s_waitcnt lgkmcnt(0)
    """)
    for i in range(16):
        a(f"v_add_f32 v{ACC+i}, v{ACC+i}, v{ACC+16+i}")
    for i in range(8):
        a(f"v_cvt_pk_bf16_f32 v{ACC+16+i}, v{ACC+2*i}, v{ACC+2*i+1}")
    for aq in range(4):
        a(f"ds_write_b64 v{vT[2+aq]}, v[{ACC+16+2*aq}:{ACC+16+2*aq+1}] offset:{QBASE}")
    a("""
    s_waitcnt lgkmcnt(0)
    s_barrier
    """)
    if stamp: stamp_mark(a, 4)
    emit_attention(a, stamp, vLane, vT, sT0, sT1, sT2, sDW, sG, sB, sH, sScale, sLog2e, SRD_WS, KBASE, VBASE, QBASE)
    if stamp: stamp_end(a, sW)
    a.label(f"{name}_END")
    a("s_endpgm")
    return a

if __name__ == "__main__":
    a = gen_k1()
    a.fix_hazards(True)
    errs = a.verify_waits()
    print("wait errors:", len(errs)); [print(e) for e in errs[:30]]
    print("static/dynamic instruction counts:", a.count())
    open("k1_body.s", "w").write(a.text())

def k1_text(name, role=0, **kw):
    if role == "both":
        for r in (0, 1):
            a = gen_k1(name, role=r, **kw); a.fix_hazards(False)
            e = a.verify_waits(); assert not e, e[:5]
    a = gen_k1(name, role=role, **kw); a.fix_hazards(False)
    if role != "both":
        e = a.verify_waits(); assert not e, e[:5]
    return a.text()
```

```python
from gasm import *
from k1_attn import emit_attention

D = 4; SLOT = 24576
KBASE = D * SLOT; VBASE = KBASE + 16384; K1_LDS = VBASE + 16384
QBASE = 32768
NST = 16

def gen_k1c(name="k1", stamp=False, rot=True, part="all", pf_wo=True):
    a = Asm()
    a.ignore |= {("v", 16)}
    SRD_X, SRD_WQ, SRD_K, SRD_V, SRD_WS = 16, 20, 24, 28, 32
    (sW, sB, sH, sRot, sStage, sOffW, sOffX, sBaseW, sBaseX, sLW, sLX, sCnt, sT0, sT1, sT2, sT3,
     sKV, sScale, sLog2e, sG, sDW, sOffW2, sLWn) = range(36, 59)
    vLane = 1
    vT = [14, 15, 252, 253, 254, 255, 250, 251]
    t0, t1, t2, t3 = vT[0], vT[1], vT[2], vT[3]
    vA = [2, 3]
    vB = {(t, w): 4 + 2 * t + w for t in range(4) for w in range(2)}
    AF, BF, ACC = 16, 48, 112
    def af(buf, t, i=None):
        b = AF + 16 * buf + 4 * t
        return f"v[{b}:{b+3}]" if i is None else f"v[{b+2*i}:{b+2*i+1}]"
    def bf(buf, t, nb): b = BF + 32 * buf + 8 * t + 4 * nb; return f"v[{b}:{b+3}]"
    def acc(nb): return f"v[{ACC+16*nb}:{ACC+16*nb+15}]"
    vDWq, vDX0, vDX1 = 2, 3, 4
    vKVa = list(range(5, 13))

    if stamp: stamp_begin(a)
    a(f"""
    s_cmp_ge_u32 s2, 256
    s_cbranch_scc1 {name}_END
    s_load_dwordx8 s[4:11], s[0:1], 0
    s_load_dwordx2 s[12:13], s[0:1], 56
    s_load_dwordx2 s[14:15], s[0:1], 32
    v_and_b32 v{vLane}, 63, v0
    v_lshrrev_b32 v{t0}, 6, v0
    v_readfirstlane_b32 s{sW}, v{t0}
    s_and_b32 s{sT0}, s2, 7
    s_lshl_b32 s{sT0}, s{sT0}, 2
    s_bfe_u32 s{sT1}, s2, 0x20003
    s_add_u32 s{sH}, s{sT0}, s{sT1}
    s_lshr_b32 s{sB}, s2, 5
    s_and_b32 s{sDW}, s{sW}, 3
    s_lshr_b32 s{sG}, s{sW}, 2
    s_and_b32 s{sT0}, s{sH}, 3
    s_lshl_b32 s{sT0}, s{sT0}, 1
    s_add_u32 s{sT0}, s{sT0}, s{sB}
    s_lshl_b32 s{sT0}, s{sT0}, 1
    s_and_b32 s{sRot}, s{sT0}, 15
    s_mov_b32 s{sStage}, 0
    s_lshl_b32 s{sBaseW}, s{sH}, 8
    s_lshl_b32 s{sBaseX}, s{sB}, 17
    s_lshl_b32 s{sLW}, s{sDW}, 12
    s_lshl_b32 s{sLX}, s{sDW}, 11
    s_add_u32 s{sLX}, s{sLX}, 16384
    s_lshl_b32 s{sT0}, s{sB}, 5
    s_add_u32 s{sT0}, s{sT0}, s{sH}
    s_lshl_b32 s{sKV}, s{sT0}, 14
    s_mov_b32 s{sCnt}, {NST // D}
    """)
    if not rot: a(f"s_mov_b32 s{sRot}, 0")
    if part == "all":
        a(f"""
        s_cmp_ge_u32 s{sW}, 4
        s_cbranch_scc1 {name}_LOADER
        """)
    if part in ("all", "c"):
        a(f"""
        v_lshrrev_b32 v{t0}, 5, v{vLane}
        v_lshlrev_b32 v{vA[0]}, 11, v{t0}
        v_bfe_u32 v{t0}, v{vLane}, 2, 2
        v_lshl_add_u32 v{vA[0]}, v{t0}, 8, v{vA[0]}
        v_xor_b32 v{t0}, s{sDW}, v{t0}
        v_lshl_add_u32 v{vA[0]}, v{t0}, 6, v{vA[0]}
        v_bfe_u32 v{t0}, v{vLane}, 4, 1
        v_lshl_add_u32 v{vA[0]}, v{t0}, 5, v{vA[0]}
        v_and_b32 v{t0}, 3, v{vLane}
        v_lshl_add_u32 v{vA[0]}, v{t0}, 3, v{vA[0]}
        v_add_u32 v{vA[1]}, 49152, v{vA[0]}
        v_and_b32 v{t0}, 31, v{vLane}
        v_lshlrev_b32 v{t0}, 7, v{t0}
        v_lshrrev_b32 v{t1}, 5, v{vLane}
        v_bfe_u32 v{t2}, v{vLane}, 1, 3
        v_xor_b32 v{t1}, v{t1}, v{t2}
        v_lshl_add_u32 v{vB[(0,0)]}, v{t1}, 4, v{t0}
        v_xor_b32 v{vB[(1,0)]}, 32, v{vB[(0,0)]}
        v_xor_b32 v{vB[(2,0)]}, 64, v{vB[(0,0)]}
        v_xor_b32 v{vB[(3,0)]}, 96, v{vB[(0,0)]}
        """)
        for t in range(4): a(f"v_add_u32 v{vB[(t,1)]}, 49152, v{vB[(t,0)]}")
        for i in range(32): a(f"v_mov_b32 v{ACC+i}, 0")
        for i in range(16): a(f"v_mov_b32 v{AF+16+i}, 0")
        for i in range(32): a(f"v_mov_b32 v{BF+32+i}, 0")
        a("s_waitcnt lgkmcnt(0)")
        if stamp: stamp_mark(a, 1)
        a.label(f"{name}_CL")
        a.loop_begin("CL", NST // D)
        for sl in range(D):
            win = sl >> 1; so = (sl & 1) * SLOT; buf = sl & 1
            a("s_barrier")
            if stamp and sl == 0:
                a(f"s_cmp_lg_u32 s{sCnt}, {NST // D}")
                a(f"s_cbranch_scc1 {name}_SK1")
                stamp_mark(a, 2)
                a.label(f"{name}_SK1")
            for hf in range(2):
                if hf == 1: a("s_waitcnt lgkmcnt(4)")
                for t in (2 * hf, 2 * hf + 1):
                    a(f"ds_read_b64_tr_b16 {af(buf,t,0)}, v{vA[win]} offset:{so + t*4096}")
                    a(f"ds_read_b64_tr_b16 {af(buf,t,1)}, v{vA[win]} offset:{so + t*4096 + 1024}")
                    a(f"ds_read_b128 {bf(buf,t,0)}, v{vB[(t,win)]} offset:{so + 16384}")
                    a(f"ds_read_b128 {bf(buf,t,1)}, v{vB[(t,win)]} offset:{so + 16384 + 4096}")
                for t in (2 * hf, 2 * hf + 1):
                    for nb in range(2):
                        a(f"v_mfma_f32_32x32x16_bf16 {acc(nb)}, {af(buf^1,t)}, {bf(buf^1,t,nb)}, {acc(nb)}")
            a("s_waitcnt lgkmcnt(0)")
        a(f"""
        s_sub_u32 s{sCnt}, s{sCnt}, 1
        s_cmp_lg_u32 s{sCnt}, 0
        s_cbranch_scc1 {name}_CL
        """)
        a.loop_end("CL")
        for t in range(4):
            for nb in range(2):
                a(f"v_mfma_f32_32x32x16_bf16 {acc(nb)}, {af(1,t)}, {bf(1,t,nb)}, {acc(nb)}")
        if stamp: stamp_mark(a, 3)
        a(f"""
        v_and_b32 v{vT[2]}, 31, v{vLane}
        v_lshlrev_b32 v{vT[2]}, 8, v{vT[2]}
        v_and_b32 v{vT[3]}, 15, v{vLane}
        s_lshl_b32 s{sT0}, s{sDW}, 2
        v_xor_b32 v{vT[3]}, s{sT0}, v{vT[3]}
        v_lshl_add_u32 v{vT[2]}, v{vT[3]}, 4, v{vT[2]}
        v_lshrrev_b32 v{vT[3]}, 5, v{vLane}
        v_lshl_add_u32 v{vT[2]}, v{vT[3]}, 3, v{vT[2]}
        v_xor_b32 v{vT[3]}, 16, v{vT[2]}
        v_xor_b32 v{vT[4]}, 32, v{vT[2]}
        v_xor_b32 v{vT[5]}, 48, v{vT[2]}
        """)
        for nb in range(2):
            for i in range(8):
                a(f"v_cvt_pk_bf16_f32 v{AF+8*nb+i}, v{ACC+16*nb+2*i}, v{ACC+16*nb+2*i+1}")
        for nb in range(2):
            for aq in range(4):
                a(f"ds_write_b64 v{vT[2+aq]}, v[{AF+8*nb+2*aq}:{AF+8*nb+2*aq+1}] offset:{QBASE + nb*8192}")
        a("s_waitcnt lgkmcnt(0)")
        if part == "all": a(f"s_branch {name}_JOIN")
    if part in ("all", "l"):
        a.label(f"{name}_LOADER")
        a(f"""
        v_lshrrev_b32 v{t0}, 4, v{vLane}
        v_and_b32 v{t1}, 15, v{vLane}
        v_lshlrev_b32 v{t2}, 2, v{t0}
        v_xor_b32 v{t2}, v{t1}, v{t2}
        v_lshlrev_b32 v{vDWq}, 13, v{t0}
        v_lshl_add_u32 v{vDWq}, v{t2}, 4, v{vDWq}
        s_lshl_b32 s{sT0}, s{sDW}, 17
        v_add_u32 v{vDWq}, s{sT0}, v{vDWq}
        v_lshrrev_b32 v{t2}, 3, v{vLane}
        v_and_b32 v{t3}, 7, v{vLane}
        v_xor_b32 v{t3}, v{t3}, v{t0}
        v_lshlrev_b32 v{vDX0}, 11, v{t2}
        s_lshl_b32 s{sT0}, s{sDW}, 15
        v_add_u32 v{vDX0}, s{sT0}, v{vDX0}
        v_add_u32 v{vDX1}, 16384, v{vDX0}
        v_lshl_add_u32 v{vDX0}, v{t3}, 4, v{vDX0}
        v_xor_b32 v{t3}, 4, v{t3}
        v_lshl_add_u32 v{vDX1}, v{t3}, 4, v{vDX1}
        s_waitcnt lgkmcnt(0)
        s_mov_b32 s{SRD_X}, s4
        s_and_b32 s{SRD_X+1}, s5, 0xffff
        s_mov_b32 s{SRD_X+2}, 0x100000
        s_mov_b32 s{SRD_X+3}, 0x00020000
        s_mov_b32 s{SRD_WQ}, s10
        s_and_b32 s{SRD_WQ+1}, s11, 0xffff
        s_mov_b32 s{SRD_WQ+2}, 0x800000
        s_mov_b32 s{SRD_WQ+3}, 0x00020000
        """)
        def issue(slot):
            sb = slot * SLOT
            a(f"""
            s_add_u32 s{sT0}, s{sStage}, s{sRot}
            s_and_b32 s{sT0}, s{sT0}, 15
            s_lshl_b32 s{sT1}, s{sT0}, 19
            s_add_u32 s{sOffW}, s{sBaseW}, s{sT1}
            s_lshl_b32 s{sT3}, s{sT0}, 7
            s_add_u32 s{sOffX}, s{sBaseX}, s{sT3}
            """)
            for jj in range(4):
                a(f"""
                s_add_u32 m0, s{sLW}, {sb + jj*1024}
                {"s_add_u32 s%d, s%d, 32768" % (sOffW, sOffW) if jj else "s_add_u32 s%d, s%d, 1" % (sStage, sStage)}
                buffer_load_dwordx4 v{vDWq}, s[{SRD_WQ}:{SRD_WQ+3}], s{sOffW} offen lds
                """)
            for jj in range(2):
                a(f"""
                s_add_u32 m0, s{sLX}, {sb + jj*1024}
                s_nop 0
                buffer_load_dwordx4 v{vDX0 if jj == 0 else vDX1}, s[{SRD_X}:{SRD_X+3}], s{sOffX} offen lds
                """)
        for s in range(D - 1): issue(s)
        a(f"""
        s_mov_b32 s{SRD_K}, s6
        s_and_b32 s{SRD_K+1}, s7, 0xffff
        s_mov_b32 s{SRD_K+2}, 0x400000
        s_mov_b32 s{SRD_K+3}, 0x00020000
        s_mov_b32 s{SRD_V}, s8
        s_and_b32 s{SRD_V+1}, s9, 0xffff
        s_mov_b32 s{SRD_V+2}, 0x400000
        s_mov_b32 s{SRD_V+3}, 0x00020000
        v_lshlrev_b32 v{t2}, 8, v{t0}
        s_lshl_b32 s{sT0}, s{sDW}, 12
        v_add_u32 v{t2}, s{sT0}, v{t2}
        v_xor_b32 v{t3}, v{t1}, v{t0}
        """)
        for jj in range(4):
            a(f"v_xor_b32 v{vT[4]}, {4*jj}, v{t3}")
            a(f"v_lshl_add_u32 v{vKVa[jj]}, v{vT[4]}, 4, v{t2}")
            if jj: a(f"v_add_u32 v{vKVa[jj]}, {1024*jj}, v{vKVa[jj]}")
        a(f"""
        v_lshlrev_b32 v{t3}, 1, v{t0}
        v_xor_b32 v{t3}, v{t1}, v{t3}
        """)
        for jj in range(4):
            a(f"v_xor_b32 v{vT[4]}, {8*(jj&1)}, v{t3}")
            a(f"v_lshl_add_u32 v{vKVa[4+jj]}, v{vT[4]}, 4, v{t2}")
            if jj: a(f"v_add_u32 v{vKVa[4+jj]}, {1024*jj}, v{vKVa[4+jj]}")
        a(f"s_mov_b32 s{sLWn}, s{sLW}")
        a.label(f"{name}_LL")
        a.loop_begin("LL", NST // D)
        for sl in range(D):
            a(f"s_waitcnt vmcnt({6*(D-2)})")
            a("s_barrier")
            if sl == 1:
                a(f"""
                s_add_u32 s{sT2}, s{sLW}, 0x28000
                s_add_u32 s{sT3}, s{sLX}, 0x28000
                s_cmp_eq_u32 s{sCnt}, 1
                s_cselect_b32 s{SRD_WQ+2}, 0, s{SRD_WQ+2}
                s_cselect_b32 s{SRD_X+2}, 0, s{SRD_X+2}
                s_cselect_b32 s{sLW}, s{sT2}, s{sLW}
                s_cselect_b32 s{sLX}, s{sT3}, s{sLX}
                """)
            issue((sl + D - 1) % D)
            a(f"""
            s_cmp_lg_u32 s{sCnt}, {NST // D - 1}
            s_cbranch_scc1 {name}_NKV{sl}
            """)
            for e in range(2):
                idx = 2 * sl + e
                srd = SRD_K if idx < 4 else SRD_V
                base = (KBASE if idx < 4 else VBASE) + (idx & 3) * 1024
                a(f"""
                s_add_u32 m0, s{sLWn}, {base}
                s_nop 0
                buffer_load_dwordx4 v{vKVa[idx]}, s[{srd}:{srd+3}], s{sKV} offen lds
                """)
            a.label(f"{name}_NKV{sl}")
        a(f"""
        s_sub_u32 s{sCnt}, s{sCnt}, 1
        s_cmp_lg_u32 s{sCnt}, 0
        s_cbranch_scc1 {name}_LL
        """)
        a.loop_end("LL")
        a("s_waitcnt vmcnt(0)")
        if pf_wo:
            a(f"""
            s_mov_b32 s{SRD_X}, s14
            s_and_b32 s{SRD_X+1}, s15, 0xffff
            s_mov_b32 s{SRD_X+2}, 0x800000
            s_mov_b32 s{SRD_X+3}, 0x00020000
            v_lshrrev_b32 v{vT[2]}, 2, v{vLane}
            v_lshlrev_b32 v{vT[2]}, 11, v{vT[2]}
            v_and_b32 v{vT[3]}, 3, v{vLane}
            v_lshl_add_u32 v{vT[2]}, v{vT[3]}, 7, v{vT[2]}
            s_bfe_u32 s{sT0}, s2, 0x20001
            s_lshl_b32 s{sT0}, s{sT0}, 9
            s_lshr_b32 s{sT1}, s2, 3
            s_lshl_b32 s{sT1}, s{sT1}, 18
            s_add_u32 s{sT0}, s{sT0}, s{sT1}
            s_lshl_b32 s{sT1}, s{sDW}, 16
            s_add_u32 s{sT0}, s{sT0}, s{sT1}
            s_add_u32 s{sT1}, s{sT0}, 32768
            buffer_load_dword v16, v{vT[2]}, s[{SRD_X}:{SRD_X+3}], s{sT0} offen
            buffer_load_dword v16, v{vT[2]}, s[{SRD_X}:{SRD_X+3}], s{sT1} offen
            """)
    a.label(f"{name}_JOIN")
    a(f"""
    s_mov_b32 s{SRD_WS}, s12
    s_and_b32 s{SRD_WS+1}, s13, 0xffff
    s_mov_b32 s{SRD_WS+2}, 0x400000
    s_mov_b32 s{SRD_WS+3}, 0x00020000
    s_nop 15
    s_barrier
    """)
    if stamp: stamp_mark(a, 4)
    emit_attention(a, stamp, vLane, vT, sT0, sT1, sT2, sDW, sG, sB, sH, sScale, sLog2e, SRD_WS, KBASE, VBASE, QBASE)
    if stamp: stamp_end(a, sW)
    a.label(f"{name}_END")
    a("s_endpgm")
    return a

def k1c_text(name, **kw):
    for p in ("c", "l"):
        a = gen_k1c(name, part=p, **kw); a.fix_hazards(False)
        e = a.verify_waits(); assert not e, (p, e[:5])
    a = gen_k1c(name, part="all", **kw); a.fix_hazards(False)
    return a.text()
if __name__ == "__main__":
    for p in ("c", "l", "all"):
        a = gen_k1c(part=p); n = a.fix_hazards(False); e = a.verify_waits(); print(p, n, len(e), a.count(), e[:3])
```

```python
from gasm import *
STORE_POL = [""]
def emit_attention(a, stamp, vLane, vT, sT0, sT1, sT2, sDW, sG, sB, sH, sScale, sLog2e, SRD_WS, KBASE, VBASE, QBASE):
    t0, t1, t2, t3 = vT[0], vT[1], vT[2], vT[3]
    QF, KF, SA, VF, PB, OA = 96, 112, 176, 192, 224, 232
    vKQ = [2, 3, 4, 5]; vQa = [6, 7, 8, 9]; vVb = [10, 11, 12, 13]
    vM, vS, vTm, vSt = 246, 247, 248, 249
    def qf(ks): return f"v[{QF+4*ks}:{QF+4*ks+3}]"
    def kf(kb, ks): b = KF + 16 * kb + 4 * ks; return f"v[{b}:{b+3}]"
    def sa(kb): return f"v[{SA+4*kb}:{SA+4*kb+3}]"
    def vf(dd, j2, i=None):
        b = VF + 8 * dd + 4 * j2
        return f"v[{b}:{b+3}]" if i is None else f"v[{b+2*i}:{b+2*i+1}]"
    def pb(j2): return f"v[{PB+4*j2}:{PB+4*j2+3}]"
    def oa(dd): return f"v[{OA+4*dd}:{OA+4*dd+3}]"
    a(f"""
    v_and_b32 v{t0}, 15, v{vLane}
    v_lshrrev_b32 v{t1}, 4, v{vLane}
    v_xor_b32 v{t1}, v{t1}, v{t0}
    v_lshlrev_b32 v{t0}, 8, v{t0}
    v_lshl_add_u32 v{t0}, v{t1}, 4, v{t0}
    v_add_u32 v{vKQ[0]}, {KBASE}, v{t0}
    v_xor_b32 v{vKQ[1]}, 64, v{vKQ[0]}
    v_xor_b32 v{vKQ[2]}, 128, v{vKQ[0]}
    v_xor_b32 v{vKQ[3]}, 192, v{vKQ[0]}
    s_lshl_b32 s{sT0}, s{sDW}, 12
    s_add_u32 s{sT0}, s{sT0}, {QBASE}
    v_add_u32 v{vQa[0]}, s{sT0}, v{t0}
    v_xor_b32 v{vQa[1]}, 64, v{vQa[0]}
    v_xor_b32 v{vQa[2]}, 128, v{vQa[0]}
    v_xor_b32 v{vQa[3]}, 192, v{vQa[0]}
    """)
    for ks in range(4):
        a(f"ds_read_b128 {qf(ks)}, v{vQa[ks]}")
    for kb in range(2):
        for ks in range(4):
            a(f"ds_read_b128 {kf(kb,ks)}, v{vKQ[ks]} offset:{kb*4096}")
    a(f"""
    v_lshrrev_b32 v{t0}, 2, v{vLane}
    v_lshlrev_b32 v{t1}, 8, v{t0}
    v_bfe_u32 v{t2}, v{vLane}, 4, 1
    v_lshlrev_b32 v{t2}, 3, v{t2}
    v_bfe_u32 v{t3}, v{vLane}, 2, 2
    v_lshl_add_u32 v{t2}, v{t3}, 1, v{t2}
    v_lshl_add_u32 v{t1}, v{t2}, 4, v{t1}
    v_and_b32 v{t3}, 3, v{vLane}
    v_lshl_add_u32 v{t1}, v{t3}, 3, v{t1}
    s_lshl_b32 s{sT0}, s{sG}, 7
    v_xor_b32 v{t1}, s{sT0}, v{t1}
    v_add_u32 v{vVb[0]}, {VBASE}, v{t1}
    v_xor_b32 v{vVb[1]}, 32, v{vVb[0]}
    v_xor_b32 v{vVb[2]}, 64, v{vVb[0]}
    v_xor_b32 v{vVb[3]}, 96, v{vVb[0]}
    """)
    def mfma_s(kb, ks, first):
        c = "0" if first else sa(kb)
        a(f"v_mfma_f32_16x16x32_bf16 {sa(kb)}, {kf(kb,ks)}, {qf(ks)}, {c}")
    a("s_waitcnt lgkmcnt(4)")
    for ks in range(4): mfma_s(0, ks, ks == 0)
    for ks in range(4):
        a(f"ds_read_b128 {kf(2,ks)}, v{vKQ[ks]} offset:{2*4096}")
    a("s_waitcnt lgkmcnt(4)")
    for ks in range(4): mfma_s(1, ks, ks == 0)
    for ks in range(4):
        a(f"ds_read_b128 {kf(3,ks)}, v{vKQ[ks]} offset:{3*4096}")
    a("s_waitcnt lgkmcnt(4)")
    for ks in range(4): mfma_s(2, ks, ks == 0)
    for dd in range(2):
        for j2 in range(2):
            for i in range(2):
                a(f"ds_read_b64_tr_b16 {vf(dd,j2,i)}, v{vVb[dd]} offset:{j2*8192 + i*4096}")
    a("s_waitcnt lgkmcnt(8)")
    for ks in range(4): mfma_s(3, ks, ks == 0)
    a(f"""
    v_and_b32 v{t0}, 15, v{vLane}
    v_lshrrev_b32 v{t1}, 5, v{vLane}
    v_lshl_add_u32 v{t0}, v{t1}, 5, v{t0}
    v_lshlrev_b32 v{vSt}, 4, v{t0}
    v_bfe_u32 v{t1}, v{vLane}, 4, 1
    v_lshl_add_u32 v{vSt}, v{t1}, 3, v{vSt}
    s_and_b32 s{sT0}, s{sDW}, 1
    s_lshl_b32 s{sT0}, s{sT0}, 8
    v_add_u32 v{vSt}, s{sT0}, v{vSt}
    s_lshl_b32 s{sT0}, s{sB}, 1
    s_lshr_b32 s{sT1}, s{sDW}, 1
    s_add_u32 s{sT0}, s{sT0}, s{sT1}
    s_lshl_b32 s{sT0}, s{sT0}, 8
    s_lshl_b32 s{sT1}, s{sH}, 3
    s_add_u32 s{sT0}, s{sT0}, s{sT1}
    s_lshl_b32 s{sT1}, s{sG}, 2
    s_add_u32 s{sT0}, s{sT0}, s{sT1}
    s_lshl_b32 s{sT2}, s{sT0}, 10
    s_mov_b32 s{sScale}, 0x3db504f3
    s_mov_b32 s{sLog2e}, 0x3fb8aa3b
    """)
    for kb in range(4):
        S = [SA + 4 * kb + r for r in range(4)]
        a(f"""
        v_cvt_pk_bf16_f32 v{t0}, v{S[0]}, v{S[1]}
        v_cvt_pk_bf16_f32 v{t1}, v{S[2]}, v{S[3]}
        v_lshlrev_b32 v{S[0]}, 16, v{t0}
        v_and_b32 v{S[1]}, 0xffff0000, v{t0}
        v_lshlrev_b32 v{S[2]}, 16, v{t1}
        v_and_b32 v{S[3]}, 0xffff0000, v{t1}
        v_mul_f32 v{S[0]}, s{sScale}, v{S[0]}
        v_mul_f32 v{S[1]}, s{sScale}, v{S[1]}
        v_mul_f32 v{S[2]}, s{sScale}, v{S[2]}
        v_mul_f32 v{S[3]}, s{sScale}, v{S[3]}
        v_cvt_pk_bf16_f32 v{t0}, v{S[0]}, v{S[1]}
        v_cvt_pk_bf16_f32 v{t1}, v{S[2]}, v{S[3]}
        v_lshlrev_b32 v{S[0]}, 16, v{t0}
        v_and_b32 v{S[1]}, 0xffff0000, v{t0}
        v_lshlrev_b32 v{S[2]}, 16, v{t1}
        v_and_b32 v{S[3]}, 0xffff0000, v{t1}
        """)
    a(f"v_max3_f32 v{vM}, v{SA}, v{SA+1}, v{SA+2}")
    for i in range(3, 15, 2):
        a(f"v_max3_f32 v{vM}, v{vM}, v{SA+i}, v{SA+i+1}")
    a(f"v_max_f32 v{vM}, v{vM}, v{SA+15}")
    for sw in ("v_permlane16_swap_b32", "v_permlane32_swap_b32"):
        a(f"""
        v_mov_b32 v{vTm}, v{vM}
        {sw} v{vM}, v{vTm}
        v_max_f32 v{vM}, v{vM}, v{vTm}
        """)
    a(f"v_mul_f32 v{vM}, s{sLog2e}, v{vM}")
    for i in range(16):
        a(f"v_fma_f32 v{SA+i}, v{SA+i}, s{sLog2e}, -v{vM}")
    for i in range(16):
        a(f"v_exp_f32 v{SA+i}, v{SA+i}")
    for dd in range(2, 4):
        for j2 in range(2):
            for i in range(2):
                a(f"ds_read_b64_tr_b16 {vf(dd,j2,i)}, v{vVb[dd]} offset:{j2*8192 + i*4096}")
    a(f"v_add_f32 v{vS}, v{SA}, v{SA+1}")
    for i in range(2, 16):
        a(f"v_add_f32 v{vS}, v{vS}, v{SA+i}")
    for sw in ("v_permlane16_swap_b32", "v_permlane32_swap_b32"):
        a(f"""
        v_mov_b32 v{vTm}, v{vS}
        {sw} v{vS}, v{vTm}
        v_add_f32 v{vS}, v{vS}, v{vTm}
        """)
    a(f"v_rcp_f32 v{vS}, v{vS}")
    for i in range(16):
        a(f"v_mul_f32 v{SA+i}, v{SA+i}, v{vS}")
    for i in range(8):
        a(f"v_cvt_pk_bf16_f32 v{PB+i}, v{SA+2*i}, v{SA+2*i+1}")
    a("s_waitcnt lgkmcnt(0)")
    if stamp: stamp_mark(a, 5)
    for dd in range(4):
        a(f"v_mfma_f32_16x16x32_bf16 {oa(dd)}, {vf(dd,0)}, {pb(0)}, 0")
    for dd in range(4):
        a(f"v_mfma_f32_16x16x32_bf16 {oa(dd)}, {vf(dd,1)}, {pb(1)}, {oa(dd)}")
    for dd in range(4):
        a(f"v_cvt_pk_bf16_f32 v{SA+2*dd}, v{OA+4*dd}, v{OA+4*dd+1}")
        a(f"v_cvt_pk_bf16_f32 v{SA+2*dd+1}, v{OA+4*dd+2}, v{OA+4*dd+3}")
        a(f"buffer_store_dwordx2 v[{SA+2*dd}:{SA+2*dd+1}], v{vSt}, s[{SRD_WS}:{SRD_WS+3}], s{sT2} offen offset:{dd*1024} {STORE_POL[0]}")
```

```python
import sys
from gen_k2 import gen_k2, k2_lds
from gen_k1 import gen_k1, K1_LDS, k1_text
from gen_k1c import k1c_text
NAME = "standalone__mha_block_cached__near_ridge"
def body_of(a):
    a.fix_hazards(False)
    errs = a.verify_waits()
    assert not errs, errs[:5]
    return a.text()
def make(path, k1body, k2kw):
    ref_head = open(f"cdna_kernels/{NAME}.s.ref").read().split("\n")
    layout = [l for l in ref_head if l.startswith(";") and ("offset" in l or "Kernarg" in l)]
    NW2 = k2kw.get("NWV", 8)
    hdr = "\n".join(layout) + "\n"
    hdr += "; Two launches: K1 = fused q-projection + attention per (batch, head), o -> d_ws (bf16, MFMA fragment order);\n"
    hdr += ";               K2 = output projection o @ wo.  Generated by my own generator scripts (dev/*.py).\n"
    hdr += f"; @launch kernel=mha_k1_kernel grid=(256,1,1) block=(512,1,1) lds={K1_LDS}\n"
    hdr += f"; @launch kernel=mha_k2_kernel grid=(256,1,1) block=({64*NW2},1,1) lds={k2_lds(NW2, k2kw['P'])}\n"
    def kern(name, body): return f".globl {name}\n.p2align 8\n.type {name},@function\n{name}:\n{body}\n"
    def desc(name, vgpr=256, sgpr=102):
        return f""".amdhsa_kernel {name}
  .amdhsa_next_free_vgpr {vgpr}
  .amdhsa_next_free_sgpr {sgpr}
  .amdhsa_accum_offset {min(256, (vgpr + 3) // 4 * 4)}
  .amdhsa_group_segment_fixed_size 0
  .amdhsa_kernarg_size 64
  .amdhsa_user_sgpr_count 2
  .amdhsa_user_sgpr_kernarg_segment_ptr 1
  .amdhsa_system_sgpr_workgroup_id_x 1
.end_amdhsa_kernel
"""
    s = hdr + '.amdgcn_target "amdgcn-amd-amdhsa--gfx950"\n.text\n'
    s += kern("mha_k1_kernel", k1body)
    s += kern("mha_k2_kernel", body_of(gen_k2("k2", **k2kw)))
    s += '.section .rodata,"a"\n.p2align 6\n' + desc("mha_k1_kernel") + ".p2align 6\n" + desc("mha_k2_kernel", vgpr=128 if NW2 == 16 else 256)
    open(path, "w").write(s)
    print("wrote", path, len(s))
if __name__ == "__main__":
    K2 = dict(NWV=8, P=8, rot=True, G=2)
    make("varA.s", k1_text("k1", role=2), K2)
    make("varB.s", k1c_text("k1"), K2)
    make("varC.s", k1_text("k1", role=0), K2)
```

```python
from make_variant import *
k1 = k1_text("k1", role=2)
make("varA.s", k1, dict(NWV=8, P=8, rot=True, G=2))
make("varB.s", k1, dict(NWV=8, P=4, rot=True, G=2))
make("varC.s", k1, dict(NWV=16, P=4, rot=True, G=2))
make("varD.s", k1, dict(NWV=8, P=8, rot=False))
```

```python
from gasm import *
from k1_attn import emit_attention

D = 4
SLOT = 24576
KBASE = D * SLOT
VBASE = KBASE + 16384
K1_LDS = VBASE + 16384
XCH = 0
QBASE = 32768
NST = 16

def gen_k1(name="k1", stamp=False, rot=True, polW="", polX="", polKV="nt", role="both", no_dma=False, no_reads=False, no_mfma=False, no_bar=False, pf_wo=True, tlb_out=False):
    a = Asm()
    a.ignore |= {("v", 16), ("v", 17)}
    SRD_X, SRD_WQ, SRD_K, SRD_V, SRD_WS = 16, 20, 24, 28, 32
    (sW, sB, sH, sRot, sStage, sOffW, sOffX, sBaseW, sBaseX, sLW, sLX, sCnt, sT0, sT1, sT2, sT3,
     sKV, sScale, sLog2e, sG, sDW, sOffW2) = range(36, 58)
    vLane = 1
    vDWq, vDX = 2, 3
    vA0, vA1 = 4, 7
    vB = {(0, 0, 0): 5, (0, 0, 1): 6, (0, 1, 0): 8, (0, 1, 1): 9,
          (1, 0, 0): 10, (1, 0, 1): 11, (1, 1, 0): 12, (1, 1, 1): 13}
    vT = [14, 15, 252, 253, 254, 255, 250, 251]
    AF = 16
    BF = 32
    ACC = 64
    def af(buf, tt, i=None):
        b = AF + 8 * buf + 4 * tt
        return f"v[{b}:{b+3}]" if i is None else f"v[{b+2*i}:{b+2*i+1}]"
    def bf(buf, tt, idx): b = BF + 16 * buf + 8 * tt + 4 * idx; return f"v[{b}:{b+3}]"
    def acc(idx): return f"v[{ACC+16*idx}:{ACC+16*idx+15}]"

    if stamp: stamp_begin(a)
    a(f"""
    s_cmp_ge_u32 s2, 256
    s_cbranch_scc1 {name}_END
    s_load_dwordx8 s[4:11], s[0:1], 0
    s_load_dwordx2 s[12:13], s[0:1], 56
    s_load_dwordx2 s[14:15], s[0:1], 32
    s_load_dwordx2 s[58:59], s[0:1], 40
    v_and_b32 v{vLane}, 63, v0
    v_lshrrev_b32 v{vT[0]}, 6, v0
    v_readfirstlane_b32 s{sW}, v{vT[0]}
    s_and_b32 s{sT0}, s2, 7
    s_lshl_b32 s{sT0}, s{sT0}, 2
    s_bfe_u32 s{sT1}, s2, 0x20003
    s_add_u32 s{sH}, s{sT0}, s{sT1}
    s_lshr_b32 s{sB}, s2, 5
    s_and_b32 s{sDW}, s{sW}, 3
    s_lshr_b32 s{sG}, s{sW}, 2
    s_and_b32 s{sT0}, s{sH}, 3
    s_lshl_b32 s{sT0}, s{sT0}, 1
    s_add_u32 s{sT0}, s{sT0}, s{sB}
    s_lshl_b32 s{sT0}, s{sT0}, 1
    s_and_b32 s{sRot}, s{sT0}, 15
    s_mov_b32 s{sStage}, 0
    s_lshl_b32 s{sBaseW}, s{sH}, 8
    s_lshl_b32 s{sBaseX}, s{sB}, 17
    s_lshl_b32 s{sLW}, s{sW}, 11
    s_lshl_b32 s{sLX}, s{sW}, 10
    s_add_u32 s{sLX}, s{sLX}, 16384
    s_lshl_b32 s{sT0}, s{sB}, 5
    s_add_u32 s{sT0}, s{sT0}, s{sH}
    s_lshl_b32 s{sKV}, s{sT0}, 14
    """)
    if not rot: a(f"s_mov_b32 s{sRot}, 0")
    t0, t1, t2, t3 = vT[0], vT[1], vT[2], vT[3]
    a(f"""
    v_lshrrev_b32 v{t0}, 4, v{vLane}
    v_and_b32 v{t1}, 15, v{vLane}
    v_lshlrev_b32 v{t2}, 2, v{t0}
    v_xor_b32 v{t1}, v{t1}, v{t2}
    v_lshlrev_b32 v{vDWq}, 13, v{t0}
    v_lshl_add_u32 v{vDWq}, v{t1}, 4, v{vDWq}
    s_lshl_b32 s{sT0}, s{sW}, 16
    v_add_u32 v{vDWq}, s{sT0}, v{vDWq}
    v_lshrrev_b32 v{t1}, 3, v{vLane}
    v_and_b32 v{t2}, 7, v{vLane}
    v_xor_b32 v{t2}, v{t2}, v{t0}
    s_and_b32 s{sT0}, s{sW}, 1
    s_lshl_b32 s{sT0}, s{sT0}, 2
    v_xor_b32 v{t2}, s{sT0}, v{t2}
    v_lshlrev_b32 v{vDX}, 11, v{t1}
    v_lshl_add_u32 v{vDX}, v{t2}, 4, v{vDX}
    s_lshl_b32 s{sT0}, s{sW}, 14
    v_add_u32 v{vDX}, s{sT0}, v{vDX}
    v_lshrrev_b32 v{t0}, 5, v{vLane}
    v_lshlrev_b32 v{vA0}, 11, v{t0}
    v_bfe_u32 v{t0}, v{vLane}, 2, 2
    v_lshl_add_u32 v{vA0}, v{t0}, 8, v{vA0}
    v_xor_b32 v{t0}, s{sDW}, v{t0}
    v_lshl_add_u32 v{vA0}, v{t0}, 6, v{vA0}
    v_bfe_u32 v{t0}, v{vLane}, 4, 1
    v_lshl_add_u32 v{vA0}, v{t0}, 5, v{vA0}
    v_and_b32 v{t0}, 3, v{vLane}
    v_lshl_add_u32 v{vA0}, v{t0}, 3, v{vA0}
    s_lshl_b32 s{sT0}, s{sG}, 13
    v_add_u32 v{vA0}, s{sT0}, v{vA0}
    v_add_u32 v{vA1}, 49152, v{vA0}
    v_and_b32 v{t0}, 31, v{vLane}
    v_lshlrev_b32 v{t0}, 7, v{t0}
    v_lshrrev_b32 v{t1}, 5, v{vLane}
    v_bfe_u32 v{t2}, v{vLane}, 1, 3
    v_xor_b32 v{t1}, v{t1}, v{t2}
    s_lshl_b32 s{sT0}, s{sG}, 2
    v_xor_b32 v{t1}, s{sT0}, v{t1}
    v_lshl_add_u32 v{t0}, v{t1}, 4, v{t0}
    s_lshl_b32 s{sT0}, s{sG}, 12
    v_add_u32 v{vB[(0,0,0)]}, s{sT0}, v{t0}
    v_xor_b32 v{vB[(1,0,0)]}, 32, v{vB[(0,0,0)]}
    v_xor_b32 v{vB[(0,1,0)]}, 4096, v{vB[(0,0,0)]}
    v_xor_b32 v{vB[(1,1,0)]}, 4096, v{vB[(1,0,0)]}
    """)
    for tt in range(2):
        for idx in range(2):
            a(f"v_add_u32 v{vB[(tt,idx,1)]}, 49152, v{vB[(tt,idx,0)]}")
    for i in range(32):
        a(f"v_mov_b32 v{ACC+i}, 0")
    for i in range(8): a(f"v_mov_b32 v{AF+8+i}, 0")
    for i in range(16): a(f"v_mov_b32 v{BF+16+i}, 0")
    a(f"""
    s_waitcnt lgkmcnt(0)
    s_mov_b32 s{SRD_X}, s4
    s_and_b32 s{SRD_X+1}, s5, 0xffff
    s_mov_b32 s{SRD_X+2}, 0x100000
    s_mov_b32 s{SRD_X+3}, 0x00020000
    s_mov_b32 s{SRD_WQ}, s10
    s_and_b32 s{SRD_WQ+1}, s11, 0xffff
    s_mov_b32 s{SRD_WQ+2}, 0x800000
    s_mov_b32 s{SRD_WQ+3}, 0x00020000
    """)
    def issue_part(slot, part):
        sb = slot * SLOT
        if no_dma: return
        if part == 0:
            a(f"""
            s_add_u32 s{sT0}, s{sStage}, s{sRot}
            s_and_b32 s{sT0}, s{sT0}, 15
            s_lshl_b32 s{sT1}, s{sT0}, 19
            s_add_u32 s{sOffW}, s{sBaseW}, s{sT1}
            s_add_u32 m0, s{sLW}, {sb}
            s_lshl_b32 s{sT3}, s{sT0}, 7
            buffer_load_dwordx4 v{vDWq}, s[{SRD_WQ}:{SRD_WQ+3}], s{sOffW} offen {polW} lds
            """)
        elif part == 1:
            a(f"""
            s_add_u32 s{sOffW2}, s{sOffW}, 32768
            s_add_u32 m0, s{sLW}, {sb + 1024}
            s_add_u32 s{sOffX}, s{sBaseX}, s{sT3}
            buffer_load_dwordx4 v{vDWq}, s[{SRD_WQ}:{SRD_WQ+3}], s{sOffW2} offen {polW} lds
            """)
        else:
            a(f"""
            s_add_u32 m0, s{sLX}, {sb}
            s_add_u32 s{sStage}, s{sStage}, 1
            buffer_load_dwordx4 v{vDX}, s[{SRD_X}:{SRD_X+3}], s{sOffX} offen {polX} lds
            """)
    def issue(slot):
        for part in range(3): issue_part(slot, part)
    for s in range(D - 1): issue(s)
    a(f"""
    s_mov_b32 s{SRD_K}, s6
    s_and_b32 s{SRD_K+1}, s7, 0xffff
    s_mov_b32 s{SRD_K+2}, 0x400000
    s_mov_b32 s{SRD_K+3}, 0x00020000
    s_mov_b32 s{SRD_V}, s8
    s_and_b32 s{SRD_V+1}, s9, 0xffff
    s_mov_b32 s{SRD_V+2}, 0x400000
    s_mov_b32 s{SRD_V+3}, 0x00020000
    s_mov_b32 s{SRD_WS}, s12
    s_and_b32 s{SRD_WS+1}, s13, 0xffff
    s_mov_b32 s{SRD_WS+2}, 0x400000
    s_mov_b32 s{SRD_WS+3}, 0x00020000
    v_lshrrev_b32 v{t0}, 4, v{vLane}
    v_and_b32 v{t1}, 15, v{vLane}
    v_lshlrev_b32 v{t2}, 8, v{t0}
    s_lshl_b32 s{sT0}, s{sW}, 11
    v_add_u32 v{t2}, s{sT0}, v{t2}
    v_xor_b32 v{t3}, v{t1}, v{t0}
    s_and_b32 s{sT0}, s{sW}, 1
    s_lshl_b32 s{sT0}, s{sT0}, 3
    v_xor_b32 v{t3}, s{sT0}, v{t3}
    v_lshl_add_u32 v246, v{t3}, 4, v{t2}
    v_xor_b32 v{t3}, 4, v{t3}
    v_lshl_add_u32 v247, v{t3}, 4, v{t2}
    v_add_u32 v247, 1024, v247
    v_lshlrev_b32 v{t3}, 1, v{t0}
    v_xor_b32 v{t3}, v{t1}, v{t3}
    v_lshl_add_u32 v248, v{t3}, 4, v{t2}
    v_xor_b32 v{t3}, 8, v{t3}
    v_lshl_add_u32 v249, v{t3}, 4, v{t2}
    v_add_u32 v249, 1024, v249
    s_mov_b32 s{sCnt}, {NST // D}
    """)
    if stamp: stamp_mark(a, 1)
    a.label(f"{name}_LOOP")
    a.loop_begin("L", NST // D)
    def kv_issue(sl, tag):
        srd = SRD_K if sl < 2 else SRD_V
        base = (KBASE if sl < 2 else VBASE) + (sl & 1) * 1024
        a(f"""
        s_cmp_lg_u32 s{sCnt}, {NST // D - 1}
        s_cbranch_scc1 {name}_NKV{sl}{tag}
        s_add_u32 m0, s{sLW}, {base}
        s_nop 0
        buffer_load_dwordx4 v{246+sl}, s[{srd}:{srd+3}], s{sKV} offen {polKV} lds
        """)
        a.label(f"{name}_NKV{sl}{tag}")
    def mfma1(buf, j):
        tt, idx = j >> 1, j & 1
        if not no_mfma: a(f"v_mfma_f32_32x32x16_bf16 {acc(idx)}, {af(buf,tt)}, {bf(buf,tt,idx)}, {acc(idx)}")
    for sl in range(D):
        win = sl >> 1; so = (sl & 1) * SLOT
        vA = vA0 if win == 0 else vA1
        buf = sl & 1
        a(f"s_waitcnt vmcnt({3*(D-2)})")
        if not no_bar: a("s_barrier")
        if stamp and sl == 0:
            a(f"s_cmp_lg_u32 s{sCnt}, {NST // D}")
            a(f"s_cbranch_scc1 {name}_SK1")
            stamp_mark(a, 2)
            a.label(f"{name}_SK1")
        if role == 3:
            mfma1(buf ^ 1, 0); mfma1(buf ^ 1, 1)
        for tt in range(2):
            if no_reads: break
            a(f"ds_read_b64_tr_b16 {af(buf,tt,0)}, v{vA} offset:{so + tt*4096}")
            a(f"ds_read_b64_tr_b16 {af(buf,tt,1)}, v{vA} offset:{so + tt*4096 + 1024}")
            a(f"ds_read_b128 {bf(buf,tt,0)}, v{vB[(tt,0,win)]} offset:{so + 16384}")
            a(f"ds_read_b128 {bf(buf,tt,1)}, v{vB[(tt,1,win)]} offset:{so + 16384}")
        if sl == 1:
            a(f"""
            s_add_u32 s{sT2}, s{sLW}, 0x28000
            s_add_u32 s{sT3}, s{sLX}, 0x28000
            s_cmp_eq_u32 s{sCnt}, 1
            s_cselect_b32 s{SRD_WQ+2}, 0, s{SRD_WQ+2}
            s_cselect_b32 s{SRD_X+2}, 0, s{SRD_X+2}
            s_cselect_b32 s{sLW}, s{sT2}, s{sLW}
            s_cselect_b32 s{sLX}, s{sT3}, s{sLX}
            """)
        if role == "both":
            a(f"""
            s_cmp_eq_u32 s{sG}, 0
            s_cbranch_scc0 {name}_G1_{sl}
            """)
            issue((sl + D - 1) % D); kv_issue(sl, "a")
            for j in range(4): mfma1(buf ^ 1, j)
            a(f"s_branch {name}_GJ_{sl}")
            a.label(f"{name}_G1_{sl}")
            for j in range(4): mfma1(buf ^ 1, j)
            issue((sl + D - 1) % D); kv_issue(sl, "b")
            a.label(f"{name}_GJ_{sl}")
        elif role == 0:
            issue((sl + D - 1) % D); kv_issue(sl, "a")
            for j in range(4): mfma1(buf ^ 1, j)
        elif role == 1:
            for j in range(4): mfma1(buf ^ 1, j)
            issue((sl + D - 1) % D); kv_issue(sl, "b")
        elif role == 3:
            issue((sl + D - 1) % D); kv_issue(sl, "d")
            mfma1(buf ^ 1, 2); mfma1(buf ^ 1, 3)
        elif role == 2:
            for j in range(3):
                mfma1(buf ^ 1, j); issue_part((sl + D - 1) % D, j)
            mfma1(buf ^ 1, 3); kv_issue(sl, "c")
        a("s_waitcnt lgkmcnt(0)")
    a(f"""
    s_sub_u32 s{sCnt}, s{sCnt}, 1
    s_cmp_lg_u32 s{sCnt}, 0
    s_cbranch_scc1 {name}_LOOP
    """)
    a.loop_end("L")
    for j in range(4): mfma1((D - 1) & 1, j)
    a("s_nop 15")
    if stamp: stamp_mark(a, 3)
    vX = vT[0]
    a("s_waitcnt vmcnt(0)")
    if pf_wo:
        a(f"""
        s_mov_b32 s{SRD_X}, s14
        s_and_b32 s{SRD_X+1}, s15, 0xffff
        s_mov_b32 s{SRD_X+2}, 0x800000
        s_mov_b32 s{SRD_X+3}, 0x00020000
        v_lshrrev_b32 v{vT[2]}, 2, v{vLane}
        v_lshlrev_b32 v{vT[2]}, 11, v{vT[2]}
        v_and_b32 v{vT[3]}, 3, v{vLane}
        v_lshl_add_u32 v{vT[2]}, v{vT[3]}, 7, v{vT[2]}
        s_bfe_u32 s{sT0}, s2, 0x20001
        s_lshl_b32 s{sT0}, s{sT0}, 9
        s_lshr_b32 s{sT1}, s2, 3
        s_lshl_b32 s{sT1}, s{sT1}, 18
        s_add_u32 s{sT0}, s{sT0}, s{sT1}
        s_lshl_b32 s{sT1}, s{sW}, 15
        s_add_u32 s{sT0}, s{sT0}, s{sT1}
        buffer_load_dword v16, v{vT[2]}, s[{SRD_X}:{SRD_X+3}], s{sT0} offen
        """)
        if tlb_out:
            a(f"""
            s_mov_b32 s{SRD_WQ}, s58
            s_and_b32 s{SRD_WQ+1}, s59, 0xffff
            s_mov_b32 s{SRD_WQ+2}, 0x100000
            s_mov_b32 s{SRD_WQ+3}, 0x00020000
            buffer_load_dword v17, v{vLane}, s[{SRD_WQ}:{SRD_WQ+3}], 0 offen
            """)
    a(f"""
    v_lshlrev_b32 v{vX}, 4, v{vLane}
    s_lshl_b32 s{sT0}, s{sW}, 12
    v_add_u32 v{vT[1]}, s{sT0}, v{vX}
    """)
    for qd in range(4):
        a(f"ds_write_b128 v{vT[1]}, v[{ACC+16+4*qd}:{ACC+16+4*qd+3}] offset:{XCH + qd*1024}")
    a(f"""
    s_xor_b32 s{sT0}, s{sW}, 4
    s_lshl_b32 s{sT0}, s{sT0}, 12
    v_add_u32 v{vT[1]}, s{sT0}, v{vX}
    s_waitcnt lgkmcnt(0)
    s_barrier
    """)
    for qd in range(4):
        a(f"ds_read_b128 v[{ACC+16+4*qd}:{ACC+16+4*qd+3}], v{vT[1]} offset:{XCH + qd*1024}")
    a(f"""
    v_and_b32 v{vT[2]}, 31, v{vLane}
    v_lshlrev_b32 v{vT[2]}, 8, v{vT[2]}
    s_lshl_b32 s{sT0}, s{sG}, 13
    v_add_u32 v{vT[2]}, s{sT0}, v{vT[2]}
    v_and_b32 v{vT[3]}, 15, v{vLane}
    s_lshl_b32 s{sT0}, s{sDW}, 2
    v_xor_b32 v{vT[3]}, s{sT0}, v{vT[3]}
    v_lshl_add_u32 v{vT[2]}, v{vT[3]}, 4, v{vT[2]}
    v_lshrrev_b32 v{vT[3]}, 5, v{vLane}
    v_lshl_add_u32 v{vT[2]}, v{vT[3]}, 3, v{vT[2]}
    v_xor_b32 v{vT[3]}, 16, v{vT[2]}
    v_xor_b32 v{vT[4]}, 32, v{vT[2]}
    v_xor_b32 v{vT[5]}, 48, v{vT[2]}
    s_waitcnt lgkmcnt(0)
    """)
    for i in range(16):
        a(f"v_add_f32 v{ACC+i}, v{ACC+i}, v{ACC+16+i}")
    for i in range(8):
        a(f"v_cvt_pk_bf16_f32 v{ACC+16+i}, v{ACC+2*i}, v{ACC+2*i+1}")
    for aq in range(4):
        a(f"ds_write_b64 v{vT[2+aq]}, v[{ACC+16+2*aq}:{ACC+16+2*aq+1}] offset:{QBASE}")
    a("""
    s_waitcnt lgkmcnt(0)
    s_barrier
    """)
    if stamp: stamp_mark(a, 4)
    emit_attention(a, stamp, vLane, vT, sT0, sT1, sT2, sDW, sG, sB, sH, sScale, sLog2e, SRD_WS, KBASE, VBASE, QBASE)
    if stamp: stamp_end(a, sW)
    a.label(f"{name}_END")
    a("s_endpgm")
    return a

if __name__ == "__main__":
    a = gen_k1()
    a.fix_hazards(True)
    errs = a.verify_waits()
    print("wait errors:", len(errs)); [print(e) for e in errs[:30]]
    print("static/dynamic instruction counts:", a.count())
    open("k1_body.s", "w").write(a.text())

def k1_text(name, role=0, **kw):
    if role == "both":
        for r in (0, 1):
            a = gen_k1(name, role=r, **kw); a.fix_hazards(False)
            e = a.verify_waits(); assert not e, e[:5]
    a = gen_k1(name, role=role, **kw); a.fix_hazards(False)
    if role != "both":
        e = a.verify_waits(); assert not e, e[:5]
    return a.text()
```

```python
from gasm import *

def k2_lds(NWV=8, P=8): return NWV * max(P * 2048, 8192)

def gen_k2(name="k2", stamp=False, NWV=8, P=8, rot=True, no_compute=False, G=1, polW="", polO="", touch=0, hackO=False, hackW=False, odma_nc=False, tlb_out=False):
    a = Asm()
    a.ignore |= {('v', 12), ('v', 13), ('v', 14)}
    NSTEP = 256 // NWV
    KROWS = 4096 // NWV
    WAVE_LDS = max(P * 2048, 8192)
    sWO, sWS, sOUT = 4, 6, 8
    SRD_W, SRD_O, SRD_OUT = 12, 16, 20
    sWV, sMT, sNT, sOffW, sOffO, sLB, sCnt, sT0, sT1, sK, sBaseW, sBaseO, sRot, sT2 = range(24, 38)
    GS = NSTEP // G
    TG = 4
    sTW, sTO, sTC = 38, 39, 40
    vDum = 12
    vLane, vVoffW, vVoffO, vWa0, vWa1, vT1, vT2, vT3, vT4, vRed, vOutA = 1, 2, 3, 4, 5, 6, 7, 8, 9, 10, 11
    if NWV == 16:
        ACC, WF, ORING, RD0, VB = 16, 48, 64, 64, 112
    else:
        ACC, WF, ORING, RD0, VB = 64, 96, 128, 128, 200
    def acc(nb): return f"v[{ACC+16*nb}:{ACC+16*nb+15}]"
    def wf(buf, nb, i=None):
        b = WF + buf * 8 + nb * 4
        return f"v[{b}:{b+3}]" if i is None else f"v[{b+2*i}:{b+2*i+1}]"
    def oreg(slot): return f"v[{ORING+4*slot}:{ORING+4*slot+3}]"

    if stamp: stamp_begin(a)
    a(f"""
    s_cmp_ge_u32 s2, 256
    s_cbranch_scc1 {name}_END
    s_load_dwordx2 s[{sWO}:{sWO+1}], s[0:1], 32
    s_load_dwordx2 s[{sWS}:{sWS+1}], s[0:1], 56
    s_load_dwordx2 s[{sOUT}:{sOUT+1}], s[0:1], 40
    v_and_b32 v{vLane}, 63, v0
    v_lshrrev_b32 v{vT1}, 6, v0
    v_readfirstlane_b32 s{sWV}, v{vT1}
    s_and_b32 s{sT0}, s2, 1
    s_lshl_b32 s{sT0}, s{sT0}, 3
    s_bfe_u32 s{sT1}, s2, 0x30003
    s_add_u32 s{sMT}, s{sT0}, s{sT1}
    s_bfe_u32 s{sT0}, s2, 0x20001
    s_lshl_b32 s{sT0}, s{sT0}, 2
    s_lshr_b32 s{sT1}, s2, 6
    s_add_u32 s{sNT}, s{sT0}, s{sT1}
    v_lshrrev_b32 v{vT1}, 4, v{vLane}
    v_bfe_u32 v{vT2}, v{vLane}, 3, 1
    v_lshl_add_u32 v{vT2}, v{vT1}, 1, v{vT2}
    v_bfe_u32 v{vT3}, v{vLane}, 2, 1
    v_and_b32 v{vT4}, 1, v{vT1}
    v_xor_b32 v{vT3}, v{vT3}, v{vT4}
    v_and_b32 v{vT4}, 3, v{vLane}
    v_lshlrev_b32 v{vVoffW}, 11, v{vT2}
    v_lshl_add_u32 v{vVoffW}, v{vT3}, 6, v{vVoffW}
    v_lshl_add_u32 v{vVoffW}, v{vT4}, 4, v{vVoffW}
    v_lshlrev_b32 v{vVoffO}, 4, v{vLane}
    v_bfe_u32 v{vT1}, v{vLane}, 5, 1
    v_lshlrev_b32 v{vWa0}, 10, v{vT1}
    v_bfe_u32 v{vT1}, v{vLane}, 3, 1
    v_lshl_add_u32 v{vWa0}, v{vT1}, 8, v{vWa0}
    v_lshl_add_u32 v{vWa0}, v{vT1}, 6, v{vWa0}
    v_bfe_u32 v{vT1}, v{vLane}, 2, 1
    v_lshl_add_u32 v{vWa0}, v{vT1}, 7, v{vWa0}
    v_bfe_u32 v{vT1}, v{vLane}, 4, 1
    v_lshl_add_u32 v{vWa0}, v{vT1}, 5, v{vWa0}
    v_and_b32 v{vT1}, 3, v{vLane}
    v_lshl_add_u32 v{vWa0}, v{vT1}, 3, v{vWa0}
    s_mul_i32 s{sLB}, s{sWV}, {WAVE_LDS}
    v_add_u32 v{vWa0}, s{sLB}, v{vWa0}
    v_xor_b32 v{vWa1}, 64, v{vWa0}
    s_and_b32 s{sT0}, s{sMT}, 7
    s_and_b32 s{sT1}, s{sNT}, 3
    s_lshl_b32 s{sT1}, s{sT1}, 1
    s_add_u32 s{sT0}, s{sT0}, s{sT1}
    s_mul_i32 s{sRot}, s{sT0}, {GS // 8}
    s_and_b32 s{sRot}, s{sRot}, {GS - 1}
    s_mov_b32 s{sK}, 0
    """)
    if not rot: a(f"s_mov_b32 s{sRot}, 0")
    for i in range(32):
        a(f"v_mov_b32 v{ACC+i}, 0")
    a(f"""
    s_waitcnt lgkmcnt(0)
    s_mov_b32 s{SRD_W}, s{sWO}
    s_and_b32 s{SRD_W+1}, s{sWO+1}, 0xffff
    s_mov_b32 s{SRD_W+2}, 0x800000
    s_mov_b32 s{SRD_W+3}, 0x00020000
    s_mul_i32 s{sBaseW}, s{sWV}, {KROWS*2048 if not hackW else 0}
    s_lshl_b32 s{sT0}, s{sNT}, 7
    s_add_u32 s{sBaseW}, s{sBaseW}, s{sT0}
    s_lshl_b32 s{sT0}, s{sMT}, {18 if not hackO else 31}
    s_mul_i32 s{sT1}, s{sWV}, {NSTEP*1024}
    {"s_add_u32 s%d, s%d, s%d" % (sBaseO, sT0, sT1) if not hackO else "s_mov_b32 s%d, s%d" % (sBaseO, sT1)}
    s_mov_b32 s{SRD_O}, s{sWS}
    s_and_b32 s{SRD_O+1}, s{sWS+1}, 0xffff
    s_mov_b32 s{SRD_O+2}, 0x400000
    s_mov_b32 s{SRD_O+3}, 0x00020000
    s_mov_b32 s{SRD_OUT}, s{sOUT}
    s_and_b32 s{SRD_OUT+1}, s{sOUT+1}, 0xffff
    s_mov_b32 s{SRD_OUT+2}, 0x100000
    s_mov_b32 s{SRD_OUT+3}, 0x00020000
    """)
    def issue(slot):
        a(f"""
        s_add_u32 s{sT2}, s{sK}, s{sRot}
        s_and_b32 s{sT2}, s{sT2}, {GS-1}
        s_and_b32 s{sT0}, s{sK}, {(NSTEP-1) & ~(GS-1)}
        s_or_b32 s{sT2}, s{sT2}, s{sT0}
        s_lshl_b32 s{sT0}, s{sT2}, 15
        s_add_u32 s{sOffW}, s{sBaseW}, s{sT0}
        s_lshl_b32 s{sT1}, s{sT2}, 10
        s_add_u32 s{sOffO}, s{sBaseO}, s{sT1}
        s_add_u32 m0, s{sLB}, {slot*2048}
        {("buffer_load_dwordx4 %s, v%d, s[%d:%d], s%d offen %s" % (oreg(slot), vVoffO, SRD_O, SRD_O+3, sOffO, polO)) if not odma_nc else ("buffer_load_dwordx4 v%d, s[%d:%d], s%d offen lds" % (vVoffO, SRD_O, SRD_O+3, sOffO))}
        buffer_load_dwordx4 v{vVoffW}, s[{SRD_W}:{SRD_W+3}], s{sOffW} offen {polW} lds
        s_add_u32 s{sOffW}, s{sOffW}, 16384
        s_add_u32 m0, s{sLB}, {slot*2048+1024}
        s_add_u32 s{sK}, s{sK}, 1
        buffer_load_dwordx4 v{vVoffW}, s[{SRD_W}:{SRD_W+3}], s{sOffW} offen {polW} lds
        """)
    def do_touch(gdist):
        a(f"""
        s_add_u32 s{sT0}, s{sTC}, {gdist}
        s_lshl_b32 s{sT1}, s{sT0}, 17
        s_add_u32 s{sT1}, s{sT1}, s{sTW}
        buffer_load_dword v{vDum}, v{vVoffW}, s[{SRD_W}:{SRD_W+3}], s{sT1} offen
        s_lshl_b32 s{sT1}, s{sT0}, 12
        s_add_u32 s{sT1}, s{sT1}, s{sTO}
        buffer_load_dword v{vDum+1}, v{vVoffO}, s[{SRD_O}:{SRD_O+3}], s{sT1} offen
        s_add_u32 s{sTC}, s{sTC}, 1
        """)
    def trread(slot, buf):
        for nb in range(2):
            for i in range(2):
                a(f"ds_read_b64_tr_b16 {wf(buf, nb, i)}, v{vWa0 if nb == 0 else vWa1} offset:{slot*2048 + i*512}")
    if tlb_out:
        a(f"buffer_load_dword v{vDum+2}, v{vVoffO}, s[{SRD_OUT}:{SRD_OUT+3}], 0 offen")
    seq = []
    if touch:
        a(f"""
        s_and_b32 s{sT0}, s{sMT}, 7
        s_lshl_b32 s{sT0}, s{sT0}, 14
        s_add_u32 s{sTW}, s{sBaseW}, s{sT0}
        s_and_b32 s{sT0}, s{sNT}, 3
        s_lshl_b32 s{sT0}, s{sT0}, 10
        s_add_u32 s{sTO}, s{sBaseO}, s{sT0}
        s_mov_b32 s{sTC}, 0
        """)
        for g0 in range(touch):
            a(f"s_sub_u32 s{sTC}, s{sTC}, {touch}")
            do_touch(touch)
            a(f"s_add_u32 s{sTC}, s{sTC}, {touch}")
        a(f"s_mov_b32 s{sTC}, 0")
    for s in range(P - 1): issue(s)
    a(f"s_waitcnt vmcnt({3*(P-2)})")
    if stamp: stamp_mark(a, 1)
    if not no_compute: trread(0, 0)
    a(f"s_mov_b32 s{sCnt}, {NSTEP // P}")
    a.label(f"{name}_LOOP")
    a.loop_begin("L", NSTEP // P)
    for st in range(P):
        if st == 1:
            a(f"""
            s_cmp_eq_u32 s{sCnt}, 1
            s_cselect_b32 s{SRD_W+2}, 0, s{SRD_W+2}
            s_cselect_b32 s{SRD_O+2}, 0, s{SRD_O+2}
            """)
        ntouch_after = 0
        if touch:
            if st == 0:
                a(f"""
                s_add_u32 s{sT0}, s{sTW}, 0x40000000
                s_add_u32 s{sT1}, s{sTO}, 0x40000000
                s_cmp_eq_u32 s{sCnt}, 1
                s_cselect_b32 s{sTW}, s{sT0}, s{sTW}
                s_cselect_b32 s{sTO}, s{sT1}, s{sTO}
                """)
            if st % TG == 0: do_touch(touch)
            ntouch_after = 2 * sum(1 for d in range(P - 2) if st - d >= 0 and (st - d) % TG == 0)
        issue((st - 1) % P)
        a(f"s_waitcnt vmcnt({3*(P-2) + ntouch_after})")
        if no_compute: continue
        trread((st + 1) % P, (st + 1) % 2)
        a("s_waitcnt lgkmcnt(4)")
        for nb in range(2):
            a(f"v_mfma_f32_32x32x16_bf16 {acc(nb)}, {wf(st % 2, nb)}, {oreg(st)}, {acc(nb)}")
    a(f"""
    s_sub_u32 s{sCnt}, s{sCnt}, 1
    s_cmp_lg_u32 s{sCnt}, 0
    s_cbranch_scc1 {name}_LOOP
    """)
    a.loop_end("L")
    if stamp: stamp_mark(a, 2)
    a(f"""
    s_waitcnt vmcnt(0) lgkmcnt(0)
    v_lshlrev_b32 v{vRed}, 4, v{vLane}
    v_add_u32 v{vT1}, s{sLB}, v{vRed}
    """)
    for q8 in range(8):
        a(f"ds_write_b128 v{vT1}, v[{ACC+4*q8}:{ACC+4*q8+3}] offset:{q8*1024}")
    NQ = max(1, 8 // NWV)
    a(f"""
    s_lshl_b32 s{sT0}, s{sWV}, {10 + (NQ.bit_length() - 1)}
    v_add_u32 v{vRed}, s{sT0}, v{vRed}
    """)
    nwin = (NWV * WAVE_LDS + 65535) // 65536
    vWin = [vRed] + [vT2, vT3, vT4][:nwin - 1]
    for i in range(1, nwin):
        a(f"v_add_u32 v{vWin[i]}, {i*65536}, v{vRed}")
    a(f"""
    s_waitcnt lgkmcnt(0)
    s_barrier
    """)
    RD = RD0
    if NWV > 8:
        a(f"s_cmp_ge_u32 s{sWV}, 8")
        a(f"s_cbranch_scc1 {name}_END")
    for wq in range(NWV):
        for e in range(NQ):
            off = wq * WAVE_LDS + e * 1024
            a(f"ds_read_b128 v[{RD+(wq*NQ+e)*4}:{RD+(wq*NQ+e)*4+3}], v{vWin[off // 65536]} offset:{off % 65536}")
    a(f"""
    v_and_b32 v{vOutA}, 31, v{vLane}
    v_lshlrev_b32 v{vOutA}, 11, v{vOutA}
    v_lshrrev_b32 v{vT1}, 5, v{vLane}
    v_lshl_add_u32 v{vOutA}, v{vT1}, 3, v{vOutA}
    s_lshl_b32 s{sT0}, s{sMT}, 16
    s_lshl_b32 s{sT1}, s{sNT}, 7
    s_add_u32 s{sT0}, s{sT0}, s{sT1}
    s_lshl_b32 s{sT1}, s{sWV}, {4 + (NQ.bit_length() - 1)}
    s_add_u32 s{sT0}, s{sT0}, s{sT1}
    """)
    a("s_waitcnt lgkmcnt(0)")
    for e in range(NQ):
        n = NWV
        while n > 1:
            h = n // 2
            for j in range(h):
                for r in range(4):
                    d = RD + (j * NQ + e) * 4 + r; s_ = RD + ((j + h) * NQ + e) * 4 + r
                    a(f"v_add_f32 v{d}, v{d}, v{s_}")
            n = h
        a(f"v_cvt_pk_bf16_f32 v{WF+2*e}, v{RD+e*4}, v{RD+e*4+1}")
        a(f"v_cvt_pk_bf16_f32 v{WF+2*e+1}, v{RD+e*4+2}, v{RD+e*4+3}")
        a(f"buffer_store_dwordx2 v[{WF+2*e}:{WF+2*e+1}], v{vOutA}, s[{SRD_OUT}:{SRD_OUT+3}], s{sT0} offen offset:{e*16}")
    if stamp: stamp_end(a, sWV, vb=VB)
    a.label(f"{name}_END")
    a("s_endpgm")
    return a

if __name__ == "__main__":
    for NWV in (4, 8):
        a = gen_k2(NWV=NWV)
        a.fix_hazards(True)
        errs = a.verify_waits()
        print("NWV", NWV, "wait errors:", len(errs)); [print(e) for e in errs[:20]]
        print("static/dynamic instruction counts:", a.count())
    open("k2_body.s", "w").write(a.text())
```

```python
import sys, mk
from gen_k2 import gen_k2, k2_lds
from gen_k1 import gen_k1, K1_LDS, k1_text
from gen_k1c import k1c_text
def body_of(a):
    a.fix_hazards(False)
    errs = a.verify_waits()
    if errs:
        print("WAIT ERRORS:"); [print(e) for e in errs[:30]]; sys.exit(1)
    return a.text()
K2KW = dict(NWV=8, P=8, rot=True, G=2)
ks = []
ks.append(dict(name="k1_kernel", body=k1_text("k1", role=2), vgpr=256, sgpr=102, nptr=8))
ks.append(dict(name="k1s_kernel", body=k1_text("k1s", stamp=True, role=2), vgpr=256, sgpr=102, nptr=8))
ks.append(dict(name="k2_kernel", body=body_of(gen_k2("k2", **K2KW)), vgpr=256, sgpr=102, nptr=8))
ks.append(dict(name="k2s_kernel", body=body_of(gen_k2("k2s", stamp=True, **K2KW)), vgpr=256, sgpr=102, nptr=8))
mk.build("dev", ks)
print("built dev.co", K1_LDS, k2_lds(8, 8))
```
